```python
import torch

def _softmax(x, axis=-1):
    return torch.softmax(x, dim=axis)
def _gelu(x):
    return torch.nn.functional.gelu(x, approximate="tanh")
def _silu(x):
    return torch.nn.functional.silu(x)
def _sigmoid(x):
    return torch.sigmoid(x)
def _layernorm(x, axis=-1, eps=1e-5):
    m = x.mean(dim=axis, keepdim=True)
    v = x.var(dim=axis, keepdim=True, unbiased=False)
    return (x - m) / torch.sqrt(v + eps)
def _scatter_add(tgt, idx, src, axis=0):
    return tgt.clone().index_add_(axis, idx, src)
def _segment_sum(src, seg, n):
    out = torch.zeros((n,) + src.shape[1:], dtype=src.dtype)
    return out.index_add_(0, seg, src)
def _pad(x, pw):
    flat = tuple(v for pair in reversed(pw) for v in pair)
    return torch.nn.functional.pad(x, flat)

kernel_name = 'interleave_layers__sliding_local_dilated__moe_arch_mod__prompt'

def setup_inputs():

    _w = (lambda a: (lambda t: t.to(torch.bfloat16) if t.is_floating_point() else t)(torch.as_tensor(a)))
    def _A_setup():
        B, S, D = 1, 2048, 512
        return {
            "x": _w((lambda *s: torch.randn(*s, dtype=torch.bfloat16) * 0.05)(B, S, D)),
            "wqkv": _w((lambda *s: torch.randn(*s, dtype=torch.bfloat16) * 0.05)(D, 3 * D)),
            "wo": _w((lambda *s: torch.randn(*s, dtype=torch.bfloat16) * 0.05)(D, D)),
        }
    _A_in = _A_setup()

    def _B_setup():
        B, S, D, F, C = 1, 2048, 512, 1376, 2
        return {
            "x": _w((lambda *s: torch.randn(*s, dtype=torch.bfloat16) * 0.05)(B, S, D)),
            "w_r": _w((lambda *s: torch.randn(*s, dtype=torch.bfloat16) * 0.05)(D)),
            "w_gate": _w((lambda *s: torch.randn(*s, dtype=torch.bfloat16) * 0.05)(D, F)),
            "w_up": _w((lambda *s: torch.randn(*s, dtype=torch.bfloat16) * 0.05)(D, F)),
            "w_down": _w((lambda *s: torch.randn(*s, dtype=torch.bfloat16) * 0.05)(F, D)),
        }
    _B_in = _B_setup()

    return {
        "A_x": _A_in["x"],
        "A_wqkv": _A_in["wqkv"],
        "A_wo": _A_in["wo"],
        "B_x": _B_in["x"],
        "B_w_r": _B_in["w_r"],
        "B_w_gate": _B_in["w_gate"],
        "B_w_up": _B_in["w_up"],
        "B_w_down": _B_in["w_down"],
    }

def reference(A_x, A_wqkv, A_wo, B_x, B_w_r, B_w_gate, B_w_up, B_w_down):
    def _A_ref(x, wqkv, wo):
        B, S, D = x.shape
        H = 32; Dh = D // H
        W, dil = 8, 2
        qkv = (lambda x, *d: x.permute(*d))((x @ wqkv).reshape(B, S, 3, H, Dh), 2, 0, 3, 1, 4)
        q, k, v = qkv[0], qkv[1], qkv[2]
        scale = Dh ** -0.5
        pos = torch.arange(S)
        off = torch.arange(W) * dil
        idx = pos[:, None] - off[None, :]
        mask = idx >= 0
        idx_c = torch.where(mask, idx, 0).reshape(-1)
        kg = k[:, :, idx_c, :].reshape(B, H, S, W, Dh)
        vg = v[:, :, idx_c, :].reshape(B, H, S, W, Dh)
        logits = torch.einsum("bhsd,bhswd->bhsw", q, kg) * scale
        logits = torch.where(mask[None, None, :, :], logits, -1e9)
        attn = _softmax(logits, axis=-1)
        o = torch.einsum("bhsw,bhswd->bhsd", attn, vg)
        return (lambda x, *d: x.permute(*d))(o, 0, 2, 1, 3).reshape(B, S, D) @ wo

    def _B_ref(x, w_r, w_gate, w_up, w_down):
        B, S, D = x.shape
        C = 2
        r = x @ w_r
        idx = torch.argsort(-r, axis=-1)[:, :C]
        idx_e = (lambda x, n, axis: torch.repeat_interleave(x, n, dim=axis))(idx.reshape(B, C, 1), D, axis=2)
        x_sel = (lambda x, i, axis: torch.take_along_dim(x, i, dim=axis))(x, idx_e, axis=1)
        g = _silu(x_sel @ w_gate)
        u = x_sel @ w_up
        y = (g * u) @ w_down
        r_sel = _sigmoid((lambda x, i, axis: torch.take_along_dim(x, i, dim=axis))(r, idx, axis=1))
        y = y * r_sel.reshape(B, C, 1)
        b_off = (torch.arange(B) * S).reshape(B, 1)
        flat_idx = (idx + b_off).reshape(B * C)
        zero = (x * 0.0).reshape(B * S, D)
        upd = _scatter_add(zero, flat_idx, y.reshape(B * C, D), axis=0)
        return x + upd.reshape(B, S, D)

    x = A_x
    x = x + _A_ref(_layernorm(x, axis=-1), A_wqkv, A_wo)
    x = x + _B_ref(_layernorm(x, axis=-1), B_w_r, B_w_gate, B_w_up, B_w_down)
    x = x + _A_ref(_layernorm(x, axis=-1), A_wqkv, A_wo)
    x = x + _B_ref(_layernorm(x, axis=-1), B_w_r, B_w_gate, B_w_up, B_w_down)
    return x
```

```python
import re

REG_RE = re.compile(r'^(-|\|)?(?:abs\()?([vas])(?:(\d+)|\[(\d+):(\d+)\])\)?\|?$')

def regs_of(op):
    op = op.strip()
    if op in ('vcc',): return {('s', 106), ('s', 107)}
    if op == 'vcc_lo': return {('s', 106)}
    if op == 'vcc_hi': return {('s', 107)}
    if op == 'exec': return {('s', 126), ('s', 127)}
    if op == 'exec_lo': return {('s', 126)}
    if op == 'exec_hi': return {('s', 127)}
    if op == 'm0': return {('s', 124)}
    m = REG_RE.match(op)
    if not m: return set()
    k = m.group(2)
    if m.group(3) is not None:
        return {(k, int(m.group(3)))}
    return {(k, i) for i in range(int(m.group(4)), int(m.group(5)) + 1)}

TRANS = ('v_exp_f32', 'v_log_f32', 'v_rcp_f32', 'v_rsq_f32', 'v_sqrt_f32', 'v_sin_f32', 'v_cos_f32', 'v_rcp_iflag_f32')

def split_ops(s):
    out, depth, cur = [], 0, ''
    for ch in s:
        if ch in '[(': depth += 1
        if ch in '])': depth -= 1
        if ch == ',' and depth == 0:
            out.append(cur.strip()); cur = ''
        else:
            cur += ch
    if cur.strip(): out.append(cur.strip())
    return out

class Ins:
    def __init__(self, text):
        self.text = text
        t = text.split(';')[0].strip()
        parts = t.split(None, 1)
        self.mn = parts[0]
        rest = parts[1] if len(parts) > 1 else ''
        ops = split_ops(rest)
        self.mods = ''
        if ops:
            last = ops[-1].split(None, 1)
            ops[-1] = last[0]
            if len(last) > 1: self.mods = last[1]
        self.ops = ops
        mn = self.mn
        self.kind = 'other'
        self.rd = set(); self.wr = set()
        self.A = self.B = self.C = set()
        self.store_data = set()
        self.states = 1
        R = [regs_of(o) for o in ops]
        allm = ' ' + self.mods + ' '
        if mn == 's_nop':
            self.kind = 'nop'; self.states = int(ops[0], 0) + 1
        elif mn.startswith('v_mfma'):
            self.kind = 'mfma'
            self.wr = R[0]; self.A = R[1]; self.B = R[2]; self.C = R[3]
            self.rd = R[1] | R[2] | R[3]
            self.passes = 8 if '32x32' in mn else 4
        elif mn.startswith('v_'):
            self.kind = 'valu'
            self.trans = any(mn.startswith(x) for x in TRANS)
            self.dpp = '_dpp' in mn or 'row_' in allm or 'quad_perm' in allm
            self.perml = mn.startswith('v_permlane')
            self.rdlane = mn.startswith('v_readlane') or mn.startswith('v_readfirstlane')
            assert not mn.startswith('v_cmpx'), 'v_cmpx unsupported'
            if self.perml:
                self.wr = R[0] | R[1]; self.rd = R[0] | R[1]
            elif '_co_' in mn or mn.startswith('v_div_scale') or mn.startswith('v_mad_u64'):
                self.wr = R[0] | R[1]; self.rd = set().union(*R[2:])
            else:
                self.wr = R[0]; self.rd = set().union(*R[1:]) if len(R) > 1 else set()
                if mn.startswith('v_fmac') or mn.startswith('v_dot2c') or mn.startswith('v_writelane') or self.dpp or 'sdwa' in mn:
                    self.rd |= R[0]
                if mn.startswith('v_cndmask') and len(ops) == 3:
                    self.rd |= regs_of('vcc')
            self.dl = mn.startswith('v_dot')
        elif mn.startswith('ds_'):
            self.kind = 'ds'
            if mn.startswith('ds_read') or mn.startswith('ds_bpermute') or mn.startswith('ds_permute') or mn.startswith('ds_swizzle'):
                self.wr = R[0]; self.rd = set().union(*R[1:])
            else:
                self.rd = set().union(*R)
        elif mn.startswith('buffer_') or mn.startswith('global_'):
            self.kind = 'vmem'
            lds = ' lds ' in allm or '_lds_' in mn
            self.lds = lds
            if mn in ('buffer_wbl2', 'buffer_inv'):
                pass
            elif 'load' in mn:
                if lds:
                    self.rd = set().union(*R) | regs_of('m0')
                else:
                    self.wr = R[0]; self.rd = set().union(*R[1:])
            elif 'atomic' in mn:
                self.rd = set().union(*R)
                if ' sc0 ' in allm: self.wr = R[0]
            else:
                self.rd = set().union(*R)
                if 'x3' in mn or 'x4' in mn:
                    self.store_data = R[0] if mn.startswith('buffer_') else R[1]
        elif mn.startswith('s_'):
            self.kind = 'salu'
            if mn.startswith('s_cbranch') or mn == 's_branch':
                self.kind = 'branch'; self.target = ops[0]
            elif mn in ('s_endpgm', 's_barrier', 's_waitcnt', 's_sleep', 's_setprio'):
                pass
            elif mn.startswith('s_cmp') or mn.startswith('s_bitcmp'):
                self.rd = set().union(*R)
            elif mn.startswith('s_setpc'):
                self.kind = 'setpc'
            else:
                self.wr = R[0] if R else set()
                self.rd = set().union(*R[1:]) if len(R) > 1 else set()
                if 'saveexec' in mn: self.wr |= regs_of('exec')
        else:
            raise ValueError('unknown instr ' + text)

def vec(s): return {r for r in s if r[0] in 'va'}
def sca(s): return {r for r in s if r[0] == 's'}

def need(p, c):
    n = 0
    if p.kind == 'valu':
        pv = vec(p.wr); ps = sca(p.wr)
        if c.kind == 'mfma' and pv & c.rd: n = max(n, 3 if p.dl else 2)
        if c.kind == 'valu':
            if pv & c.rd:
                if p.trans: n = max(n, 1)
                if c.perml or c.dpp: n = max(n, 2)
                if c.rdlane: n = max(n, 1)
            if p.dl and (pv & (c.rd | c.wr)):
                if not (c.mn == p.mn and not (pv & (regs_of(c.ops[1]) | regs_of(c.ops[2])))): n = max(n, 3)
            if ps & c.rd:
                n = max(n, 4 if (c.mn.startswith('v_readlane') or c.mn.startswith('v_writelane')) else 2)
        if c.kind in ('vmem', 'ds') and p.dl and pv & c.rd: n = max(n, 3)
        if c.kind == 'vmem' and ps & c.rd: n = max(n, 5)
        if c.kind == 'salu' and ps & c.rd: n = max(n, 1)
    elif p.kind == 'mfma':
        k = {4: (6, 8, 8, 3), 8: (10, 12, 12, 7)}[p.passes]
        if c.kind == 'mfma':
            if p.wr & c.C and not (p.wr == c.C and p.passes == c.passes and p.mn == c.mn): n = max(n, k[0])
            if p.wr & (c.A | c.B): n = max(n, k[1])
            if p.wr & c.wr and not (p.wr & c.C): n = max(n, k[0])
        if c.kind == 'valu':
            if p.wr & (c.rd | c.wr): n = max(n, k[2])
            if vec(p.C) & c.wr: n = max(n, k[3])
        if c.kind in ('vmem', 'ds'):
            if p.wr & (c.rd | c.wr): n = max(n, k[2])
    elif p.kind == 'salu':
        if ('s', 124) in p.wr and c.kind == 'vmem' and c.lds: n = max(n, 1)
    elif p.kind == 'vmem':
        if p.store_data & c.wr:
            n = max(n, 2 if c.kind in ('valu', 'mfma') else 1)
    return n

class Prog:
    def __init__(self):
        self.items = []
        self._cap = None
        self.uid = 0
    def __call__(self, text):
        for line in text.split('\n'):
            line = line.strip()
            if not line: continue
            if line.startswith(';'):
                self._add(('c', line))
            elif line.endswith(':'):
                self._add(('l', line[:-1]))
            elif line.startswith('.'):
                self._add(('c', line))
            else:
                self._add(('i', Ins(line)))
    def _add(self, it):
        (self._cap if self._cap is not None else self.items).append(it)
    def label(self, base='L'):
        self.uid += 1
        return f'{base}_{self.uid}'
    def capture(self, fn, *a, **k):
        old = self._cap
        self._cap = []
        fn(*a, **k)
        r = self._cap
        self._cap = old
        return r
    def emit_items(self, items):
        for it in items: self._add(it)
    def weave(self, main, fill, start=0, per=None):
        n = len(main) - start
        out = list(main[:start]); fi = 0
        for k in range(n):
            out.append(main[start + k])
            tgt = (len(fill) * (k + 1) + n - 1) // n if per is None else min(len(fill), per * (k + 1))
            while fi < tgt:
                out.append(fill[fi]); fi += 1
        out += fill[fi:]
        return out
    def fix_hazards(self):
        MAXD = 13
        items = self.items
        srcs = {}
        for i, it in enumerate(items):
            if it[0] == 'i' and it[1].kind == 'branch':
                srcs.setdefault(it[1].target, []).append(i)
        pad = [0] * len(items)
        total = 0
        for i, it in enumerate(items):
            if it[0] != 'i': continue
            c = it[1]
            if c.kind in ('nop', 'branch', 'other'): continue
            worst = 0
            stack = [(i - 1, 0, False)]
            seen = set()
            while stack:
                j, d, viabr = stack.pop()
                while j >= 0 and d < MAXD:
                    if (j, d, viabr) in seen: break
                    seen.add((j, d, viabr))
                    p = items[j]
                    if p[0] == 'l':
                        for s_ in srcs.get(p[1], []):
                            stack.append((s_, d, True))
                    elif p[0] == 'i':
                        q = p[1]
                        if not viabr and (q.mn in ('s_branch', 's_endpgm') or q.kind == 'setpc'): break
                        viabr = False
                        nd = need(q, c)
                        if nd - d > worst: worst = nd - d
                        d += q.states + pad[j]
                    j -= 1
            if worst > 0:
                pad[i] = worst; total += worst
        out = []
        for i, it in enumerate(items):
            if pad[i]: out.append(('i', Ins(f's_nop {pad[i]-1}')))
            out.append(it)
        self.items = out
        return total
    def text(self):
        out = []
        for k, v in self.items:
            if k == 'i': out.append('    ' + v.text)
            elif k == 'l': out.append(v + ':')
            else: out.append(v)
        return '\n'.join(out) + '\n'
```

```python
import sys
from asmlib import *
NAME = 'interleave_layers__sliding_local_dilated__moe_arch_mod__prompt'
HDR = open('cdna_kernels/' + NAME + '.s.ref').read().split('; Override launch')[0]

EPOCH = 0
CLR1 = 0x1000; CLR2 = 0x1400; TCLR = 0x1800
CAND1 = 0x2000; CAND2 = 0x3000; SEL1 = 0x4000; SEL2 = 0x4100
RG1 = 0x10000; RG3 = 0x20000
Y1 = 0x40000; Y2 = 0x60000
STAMPS = 0x80000
GB = 81920
BUF = 30 * GB
O1 = 0x100000; X1 = O1 + BUF; O2 = X1 + BUF; X3 = O2 + BUF
WS_USED = X3 + BUF
RING = 81920
MISC = 155648
PART = MISC
COEF = MISC + 5120
OOB = 0x40000000
NF = 22
SPIN = 200000

SX, SW, SWO, SWS, SOUT, SWR = 's[40:43]', 's[44:47]', 's[48:51]', 's[52:55]', 's[56:59]', 's[60:63]'
TAG = 's72'

def vr(b, n=4): return f'v[{b}:{b+n-1}]' if n > 1 else f'v{b}'
def ar(b, n=4): return f'a[{b}:{b+n-1}]'

class VM:
    def __init__(self): self.q = []
    def issue(self, tag): self.q.append(tag)
    def cnt(self, tag):
        last = -1
        for i, t in enumerate(self.q):
            if t == tag: last = i
        assert last >= 0, tag
        return len(self.q) - 1 - last
    def reset(self): self.q = []

vI, vG = 3, 4
vWOFF, vX0, vX1, vX2, vWO = 5, 6, 7, 8, 9
vTR = 10; vXE = 11
vSB = 15
vF0, vF1 = 17, 18
vTW = 19
vSTP, vSTS, vSTX, vSTH = 24, 25, 26, 27
vONE = 28
vB0, vBDC, vBDP, vB4C, vB4P = 32, 36, 40, 44, 48
vMC = 52
vCS = 54
vRES = 66
vAF = 76
vSW = 92
vCL, vCR, vPA = 93, 94, 95
ACC = 96
WK = 156
vSTAMP = 255

class Gen:
    def __init__(self, diag=False):
        self.P = Prog()
        self.diag = diag
        self.vm = VM()
        self.nstamp = {}

    def stamp(self, k):
        if not self.diag: return
        self.P(f's_memrealtime s[98:99]\n s_waitcnt lgkmcnt(0)\n v_writelane_b32 v{vSTAMP}, s98, {k}')

    def flush_stamps(self):
        if not self.diag: return
        P = self.P
        P(f'''
        s_mov_b64 exec, -1
        s_lshl_b32 s98, s2, 2
        s_add_u32 s98, s98, s8
        s_lshl_b32 s98, s98, 8
        s_add_u32 s98, s98, {STAMPS}
        v_lshlrev_b32 v254, 2, v2
        buffer_store_dword v{vSTAMP}, v254, {SWS}, s98 offen
        ''')

    def bfround(self, d, s):
        self.P(f'v_cvt_pk_bf16_f32 v{d}, v{s}, v{s}\n v_and_b32 v{d}, 0xffff0000, v{d}')

    def ms_chain(self, mu, var, m, s, rs):
        P = self.P
        self.bfround(m, mu)
        self.bfround(s, var)
        P(f'v_add_f32 v{s}, 0x3727c5ac, v{s}')
        self.bfround(s, s)
        P(f'v_sqrt_f32 v{s}, v{s}')
        self.bfround(s, s)
        P(f'v_rcp_f32 v{rs}, v{s}')

    def mu_var(self, s2, s1, mu, var):
        self.P(f'''
        v_mul_f32 v{mu}, 0x3b000000, v{s1}
        v_mul_f32 v{var}, 0x3b000000, v{s2}
        v_fma_f32 v{var}, -v{mu}, v{mu}, v{var}
        v_max_f32 v{var}, 0, v{var}
        ''')

    def spin_begin(self):
        L = self.P.label('Lspin')
        self.P(f's_mov_b32 s39, {SPIN}\n {L}:')
        return L

    def spin_end_vcc(self, L):
        D = self.P.label('Ldone')
        self.P(f'''
        s_cbranch_vccz {D}
        s_sub_u32 s39, s39, 1
        s_cbranch_scc0 {L}
        {D}:
        ''')

    def top2_merge(self, k1, k2, b1, b2):
        self.P(f'''
        v_max_u32 v{k2}, v{k2}, v{b2}
        v_med3_u32 v{k2}, v{k1}, v{b1}, v{k2}
        v_max_u32 v{k1}, v{k1}, v{b1}
        ''')

    def top2_row(self, k1, k2, t):
        for pat in ('quad_perm:[1,0,3,2]', 'quad_perm:[2,3,0,1]', 'row_half_mirror', 'row_mirror'):
            self.P(f'''
            v_mov_b32_dpp v{t}, v{k1} {pat} row_mask:0xf bank_mask:0xf
            v_max_u32_dpp v{k2}, v{k2}, v{k2} {pat} row_mask:0xf bank_mask:0xf
            v_med3_u32 v{k2}, v{k1}, v{t}, v{k2}
            v_max_u32 v{k1}, v{k1}, v{t}
            ''')

    def top2_cross(self, k1, k2, t1, t2):
        for sw in ('v_permlane16_swap_b32', 'v_permlane32_swap_b32'):
            self.P(f'''
            v_mov_b32 v{t1}, v{k1}
            v_mov_b32 v{t2}, v{k2}
            {sw} v{k1}, v{t1}
            {sw} v{k2}, v{t2}
            ''')
            self.top2_merge(k1, k2, t1, t2)

    def poll_cands(self, base, ntiles, t):
        P = self.P
        P(f'''
        v_lshlrev_b32 v{t+12}, 4, v2
        v_add_u32 v{t+13}, 128, v2
        v_cmp_gt_u32 vcc, {ntiles}, v{t+13}
        v_min_u32 v{t+13}, {ntiles-1}, v{t+13}
        v_lshlrev_b32 v{t+13}, 4, v{t+13}
        s_mov_b64 s[34:35], vcc
        s_mov_b32 s33, {base}
        ''')
        L = self.spin_begin()
        P(f'''
        buffer_load_dwordx4 {vr(t)}, v{t+12}, {SWS}, s33 offen sc1
        buffer_load_dwordx4 {vr(t+4)}, v{t+12}, {SWS}, s33 offen offset:1024 sc1
        buffer_load_dwordx4 {vr(t+8)}, v{t+13}, {SWS}, s33 offen sc1
        s_waitcnt vmcnt(0)
        v_xor_b32 v{t+3}, {TAG}, v{t+3}
        v_xor_b32 v{t+7}, {TAG}, v{t+7}
        v_xor_b32 v{t+11}, {TAG}, v{t+11}
        v_or3_b32 v{t+3}, v{t+3}, v{t+7}, v{t+11}
        v_cmp_ne_u32 vcc, 0, v{t+3}
        ''')
        self.spin_end_vcc(L)
        P(f'''
        v_cndmask_b32 v{t+8}, 0, v{t+8}, s[34:35]
        v_cndmask_b32 v{t+9}, 0, v{t+9}, s[34:35]
        ''')
        self.top2_merge(t, t+1, t+4, t+5)
        self.top2_merge(t, t+1, t+8, t+9)
        self.top2_row(t, t+1, t+2)
        self.top2_cross(t, t+1, t+2, t+3)
        P(f'v_readfirstlane_b32 s30, v{t}\n v_readfirstlane_b32 s31, v{t+1}')

    def key_to_loc(self, d, k):
        self.P(f's_not_b32 {d}, {k}\n s_and_b32 {d}, {d}, 0xfff')

    def loc_to_vpos(self, d, loc, tmp):
        self.P(f'''
        s_lshr_b32 {tmp}, {loc}, 4
        s_mul_i32 {tmp}, {tmp}, 205
        s_lshr_b32 {tmp}, {tmp}, 10
        s_mul_i32 {tmp}, {tmp}, 7
        s_sub_u32 {d}, {loc}, {tmp}
        ''')

    def check_flags(self, voff, soff, t):
        P = self.P
        L = self.spin_begin()
        P(f'''
        buffer_load_dword v{t}, v{voff}, {SWS}, {soff} offen sc1
        s_waitcnt vmcnt(0)
        v_cmp_ne_u32 vcc, {TAG}, v{t}
        ''')
        self.spin_end_vcc(L)

    def prologue(self):
        P = self.P
        if self.diag: P(f'v_mov_b32 v{vSTAMP}, 0')
        self.stamp(0)
        P(f'''
        s_load_dwordx2 s[52:53], s[0:1], 80
        s_load_dwordx2 s[40:41], s[0:1], 0
        s_load_dwordx2 s[44:45], s[0:1], 8
        s_load_dwordx2 s[48:49], s[0:1], 16
        s_load_dwordx2 s[56:57], s[0:1], 64
        s_load_dwordx2 s[60:61], s[0:1], 32
        s_and_b32 s3, s2, 7
        s_lshr_b32 s4, s2, 3
        s_cmp_ge_u32 s2, 256
        s_cbranch_scc1 L_end
        v_lshrrev_b32 v1, 6, v0
        v_and_b32 v2, 63, v0
        v_readfirstlane_b32 s8, v1
        s_mov_b32 s54, {WS_USED}
        s_mov_b32 s55, 0x20000
        s_mov_b32 s58, 2097152
        s_mov_b32 s59, 0x20000
        s_lshr_b32 s5, s4, 3
        s_lshl_b32 s6, s3, 2
        s_add_u32 s6, s6, s5
        s_and_b32 s7, s4, 7
        v_and_b32 v{vI}, 15, v2
        v_lshrrev_b32 v{vG}, 4, v2
        s_cmp_gt_u32 s6, 28
        s_cbranch_scc1 L_ffn
        ''')

    def qkv1(self):
        P = self.P; vm = self.vm
        P(f'''
        s_mov_b32 s42, 2097152
        s_mov_b32 s43, 0x20000
        s_mov_b32 s46, 1572864
        s_mov_b32 s47, 0x20000
        s_mov_b32 s50, 524288
        s_mov_b32 s51, 0x20000
        s_mov_b32 s62, 1024
        s_mov_b32 s63, 0x20000
        s_lshl_b32 s9, s3, 1
        v_lshrrev_b32 v200, 3, v2
        v_and_b32 v201, 7, v2
        v_bfe_u32 v202, v200, 1, 1
        v_and_b32 v203, 1, v1
        v_lshl_or_b32 v202, v203, 1, v202
        v_lshlrev_b32 v202, 1, v202
        v_xor_b32 v202, v202, v201
        v_lshl_add_u32 v204, v1, 3, v200
        s_lshl_b32 s10, s7, 7
        v_lshl_add_u32 v202, v202, 4, s10
        v_mul_u32_u24 v{vWOFF}, 3072, v204
        v_add_u32 v{vWOFF}, v{vWOFF}, v202
        v_lshl_add_u32 v{vWO}, v204, 10, v202
        s_mul_i32 s11, s6, 73
        v_lshl_add_u32 v205, v203, 3, v200
        v_add_u32 v205, 64, v205
        ''')
        def rowoff(dst, prow):
            P(f'''
            v_and_b32 v208, 1023, v{prow}
            v_lshlrev_b32 v208, 11, v208
            v_bfe_u32 v209, v{prow}, 10, 1
            v_lshl_or_b32 v208, v209, 10, v208
            v_lshrrev_b32 v209, 11, v{prow}
            v_lshl_or_b32 v{dst}, v209, 30, v208
            ''')
        for dst, src, add in ((vX0, 204, 0), (vX1, 204, 32), (vX2, 205, 0)):
            P(f'''
            v_add_u32 v206, {add}, v{src}
            v_bfe_u32 v207, v206, 1, 3
            v_xor_b32 v207, v207, v201
            v_add_u32 v206, s11, v206
            ''')
            rowoff(dst, 206)
            P(f'v_lshl_or_b32 v{dst}, v207, 4, v{dst}')
        P(f'''
        s_mul_i32 s24, s7, 10
        s_add_u32 s24, s24, s11
        v_lshrrev_b32 v206, 3, v0
        v_add_u32 v206, s24, v206
        ''')
        rowoff(210, 206)
        P(f'''
        v_cmp_gt_u32 vcc, 80, v0
        v_mov_b32 v212, {OOB}
        v_lshl_or_b32 v210, v201, 7, v210
        v_cndmask_b32 v210, v212, v210, vcc
        v_subrev_u32 v206, 128, v0
        v_cmp_gt_u32 vcc, 48, v206
        v_lshlrev_b32 v206, 7, v206
        v_cndmask_b32 v211, v212, v206, vcc
        s_mul_i32 s25, s9, 98304
        s_mul_i32 s26, s4, 6144
        s_add_u32 s25, s25, s26
        s_lshr_b32 s22, s8, 1
        s_add_u32 s22, s22, s3
        s_mul_i32 s12, s8, 3072
        s_add_u32 s12, s12, {RING}
        s_lshl_b32 s13, s8, 10
        s_lshr_b32 s14, s8, 1
        s_mul_i32 s14, s14, 10240
        s_and_b32 s15, s8, 1
        s_lshl_b32 s15, s15, 10
        s_add_u32 s14, s14, s15
        s_add_u32 s14, s14, 8192
        v_mov_b32 v213, 0
        s_waitcnt lgkmcnt(0)
        buffer_load_dword v214, v211, {SW}, s25 offen
        buffer_load_dword v215, v210, {SX}, 0 offen
        buffer_load_dword v216, v213, {SWS}, 0 offen sc1
        ''')
        vm.reset()
        vm.issue('t'); vm.issue('t'); vm.issue('ep')

        def issue(p):
            G = []
            def E(t, tag):
                G.append(P.capture(P, t)); vm.issue(tag)
            if p < 16:
                if p % 2 == 0:
                    pc = p // 2
                    E(f's_add_u32 s16, s3, {pc}\n s_and_b32 s16, s16, 7\n s_lshl_b32 s16, s16, 7\n s_add_u32 m0, s13, {pc*10240}\n buffer_load_dwordx4 v{vX0}, {SX}, s16 offen lds', ('w', p))
                    E(f's_add_u32 m0, s13, {pc*10240+4096}\n buffer_load_dwordx4 v{vX1}, {SX}, s16 offen lds', ('w', p))
                    if p % 4 == 0:
                        E(f's_add_u32 s16, s22, {pc}\n s_and_b32 s16, s16, 7\n s_lshl_b32 s16, s16, 7\n s_add_u32 m0, s14, {pc*10240}\n buffer_load_dwordx4 v{vX2}, {SX}, s16 offen lds', ('w', p))
                pre = f's_add_u32 s17, s9, {p}\n s_and_b32 s17, s17, 15\n s_mul_i32 s17, s17, 98304\n s_add_u32 m0, s12, {(p%6)*12288}\n'
                for seg in range(3):
                    E(pre + f'buffer_load_dwordx4 v{vWOFF}, {SW}, s17 offen offset:{seg*1024} lds', ('w', p)); pre = ''
            else:
                m = p - 16
                pre = f's_add_u32 m0, s12, {(p%6)*12288}\n'
                for seg in range(3):
                    ks = 3 * m + seg
                    if ks > 15: break
                    E(pre + f's_mov_b32 s17, {ks*32768-seg*1024}\n buffer_load_dwordx4 v{vWO}, {SWO}, s17 offen offset:{seg*1024} lds', ('w', p)); pre = ''
            return G
        def flat(G): return [x for g in G for x in g]
        P.emit_items(flat(issue(0)))
        self.code_prefetch(217); vm.issue('pf')
        self.setup_consts()
        for p in (1, 2, 3): P.emit_items(flat(issue(p)))
        P(f'''
        v_and_b32 v200, 3, v{vI}
        v_cmp_eq_u32 vcc, 1, v200
        v_lshlrev_b32 v201, 4, v{vG}
        v_mov_b32 v202, {OOB}
        v_cndmask_b32 v201, v202, v201, vcc
        ''')
        for u in range(4):
            P(f'''
            s_lshl_b32 s16, s8, 2
            s_add_u32 s16, s16, s9
            s_add_u32 s16, s16, {u}
            s_and_b32 s16, s16, 15
            s_lshl_b32 s16, s16, 6
            buffer_load_dwordx4 {vr(vAF+4*u)}, v201, {SWR}, s16 offen
            '''); vm.issue('af')

        XF = (WK, WK + 20); SG = WK + 40; SS = WK + 60; SF = WK + 80
        assert SF + 19 <= 255
        if self.diag: SF = WK + 79 - 0
        SF = 236
        def mf(p):
            L = []
            xb = XF[p & 1]
            for T in range(5):
                for seg in range(3):
                    a = ar((p*3+seg)*4); x = vr(xb+4*T); d = vr(ACC+(T*3+seg)*4)
                    c = d if p > 0 else '0'
                    L += P.capture(P, f'v_mfma_f32_16x16x32_bf16 {d}, {a}, {x}, {c}' if seg < 2 else f'v_mfma_f32_16x16x32_bf16 {d}, {x}, {a}, {c}')
            for seg in range(3):
                a = ar((p*3+seg)*4); d = vr(vCS+seg*4); c = d if p > 0 else '0'
                L += P.capture(P, f'v_mfma_f32_16x16x32_bf16 {d}, {a}, {vr(vONE)}, {c}' if seg < 2 else f'v_mfma_f32_16x16x32_bf16 {d}, {vr(vONE)}, {a}, {c}')
            return L
        def sfreg(T):
            return SF + 4*T if T < 4 else vRES
        def statreads(m):
            L = []
            for T in range(5):
                L += P.capture(P, f'ds_read_b128 {vr(sfreg(T))}, v{vSB+(m>>1)} offset:{(m&1)*20480+T*2048}')
            return L
        def statmf(m):
            L = []
            for T in range(5):
                x = vr(sfreg(T))
                d = vr(SG+4*T); L += P.capture(P, f'v_mfma_f32_16x16x32_bf16 {d}, {x}, {x}, {d if m else 0}')
                d = vr(SS+4*T); L += P.capture(P, f'v_mfma_f32_16x16x32_bf16 {d}, {vr(vONE)}, {x}, {d if m else 0}')
            return L
        def reads(i):
            L = []
            for seg in range(3):
                for a in range(2):
                    L += P.capture(P, f'ds_read_b64_tr_b16 {ar((i*3+seg)*4+2*a,2)}, v{vTR} offset:{(i%6)*12288+seg*1024+a*512}')
            for T in range(5):
                base = vXE + (i & 1) + (2 if i >= 8 else 0); off = ((i >> 1) & 3)*10240 + T*2048
                L += P.capture(P, f'ds_read_b128 {vr(XF[i&1]+4*T)}, v{base} offset:{off}')
            return L
        def mix(M, R, D):
            out = []; n = len(M)
            if n == 0:
                return R + flat(D)
            di = 0
            for k in range(n):
                out.append(M[k])
                if k < len(R): out.append(R[k])
                tgt = (len(D)*(k+1))//n
                while di < tgt:
                    out += D[di]; di += 1
            return out + R[n:]
        for c in range(8):
            P(f's_waitcnt vmcnt({vm.cnt(("w", 2*c+1))})')
            P('s_barrier')
            if c == 0:
                self.stamp(1)
                P(f'''
                v_readfirstlane_b32 {TAG}, v216
                s_mul_i32 {TAG}, {TAG}, 0x9e3779b1
                s_add_u32 {TAG}, {TAG}, 0x7f4a7c15
                ''')
            D = []
            if c == 6:
                D += self.clears(O1, X1)
            D += issue(2*c+4) + issue(2*c+5)
            D1 = D[:(len(D)+1)//2]; D2 = D[(len(D)+1)//2:]
            M1 = mf(2*c-1) if c > 0 else []
            R1 = reads(2*c); M2 = mf(2*c); R2 = reads(2*c+1)
            if c & 1:
                R1 = R1 + statreads(c >> 1); M2 = M2 + statmf(c >> 1)
            P.emit_items(mix(M1, R1, D1))
            P('s_waitcnt lgkmcnt(0)')
            P.emit_items(mix(M2, R2, D2))
            P('s_waitcnt lgkmcnt(0)')
        W = []
        for T in range(5):
            g = SG + 4*T
            W += P.capture(P, f'''
            v_cndmask_b32 v{g}, v{g}, v{g+1}, s[64:65]
            v_cndmask_b32 v{g}, v{g}, v{g+2}, s[66:67]
            v_cndmask_b32 v{g}, v{g}, v{g+3}, s[68:69]
            v_mov_b32 v{g+1}, v{SS+4*T}
            ''')
        P.emit_items(P.weave(mf(15), W, start=2))
        P('s_mov_b64 exec, s[70:71]')
        for T in range(5):
            P(f'ds_write_b64 v{vPA}, {vr(SG+4*T,2)} offset:{T*256}')
        P('s_mov_b64 exec, -1')
        P(f'''
        s_sub_u32 s16, s7, s3
        s_and_b32 s16, s16, 7
        s_mul_i32 s16, s16, 10240
        v_lshrrev_b32 v200, 1, v{vG}
        v_lshl_add_u32 v200, v1, 1, v200
        v_bfe_u32 v201, v{vI}, 1, 3
        v_xor_b32 v200, v200, v201
        v_lshlrev_b32 v200, 4, v200
        v_lshl_add_u32 v200, v{vI}, 7, v200
        v_and_b32 v201, 1, v{vG}
        v_lshl_add_u32 v200, v201, 3, v200
        v_add_u32 v200, s16, v200
        ''')
        for T in range(5):
            P(f'ds_read_b64 {vr(vRES+2*T,2)}, v200 offset:{T*2048}')
        P(f's_waitcnt vmcnt({vm.cnt("clr")}) lgkmcnt(0)')
        P('s_barrier')
        self.stamp(2)
        P.emit_items(flat(issue(20) + issue(21)))
        self.set_flag(CLR1)

    def code_prefetch(self, t):
        L = self.P.label('Lpc')
        self.P(f'''
        s_getpc_b64 s[18:19]
        {L}:
        s_lshl_b32 s20, s4, 11
        s_sub_u32 s18, s18, {L}-{NAME}_kernel
        s_subb_u32 s19, s19, 0
        s_add_u32 s18, s18, s20
        s_addc_u32 s19, s19, 0
        v_lshlrev_b32 v{t}, 7, v{vI}
        global_load_dword v{t+1}, v{t}, s[18:19]
        ''')

    def set_flag(self, base):
        P = self.P
        P(f'''
        s_lshl_b32 s16, s6, 3
        s_add_u32 s16, s16, s7
        s_lshl_b32 s16, s16, 2
        s_add_u32 s16, s16, {base}
        v_mov_b32 v200, {TAG}
        v_mov_b32 v201, {OOB}
        v_cmp_eq_u32 vcc, 0, v0
        v_cndmask_b32 v201, v201, v0, vcc
        buffer_store_dword v200, v201, {SWS}, s16 offen sc1
        ''')
        self.vm.issue('flag')

    def clears(self, ob, xb):
        P = self.P; G = []
        pre = 'v_mov_b32 v232, -1\n v_mov_b32 v233, -1\n v_mov_b32 v234, -1\n v_mov_b32 v235, -1\n'
        S = 252 if False else None
        def E(t):
            G.append(P.capture(P, t)); self.vm.issue('clr')
        lst = [(vSTP, ob, 0), (vSTP, ob, 2), (vSTS, ob, 4), (vSTX, xb, 0), (vSTP, xb, 2), (vSTS, xb, 4)]
        if xb == X1: lst.append((vSTH, xb, 5))
        for v, b, T in lst:
            E(f's_add_u32 s18, s23, {b+T*16384}\n buffer_store_dwordx4 {vr(self.vSENT)}, v{v}, {SWS}, s18 offen sc1')
        return G

    def setup_consts(self):
        P = self.P
        self.vSENT = 70
        P(f'''
        v_bfe_u32 v200, v2, 2, 2
        v_and_b32 v201, 3, v2
        v_lshrrev_b32 v202, 1, v200
        v_and_b32 v203, 1, v{vG}
        v_lshl_or_b32 v202, v203, 1, v202
        v_xor_b32 v202, v202, v1
        v_mul_u32_u24 v{vTR}, 3072, v{vG}
        v_lshl_add_u32 v{vTR}, v200, 7, v{vTR}
        v_lshl_add_u32 v{vTR}, v202, 5, v{vTR}
        v_lshl_add_u32 v{vTR}, v201, 3, v{vTR}
        v_add_u32 v{vTR}, {RING}, v{vTR}
        v_bfe_u32 v200, v{vI}, 1, 3
        v_xor_b32 v200, v200, v{vG}
        v_lshlrev_b32 v{vXE}, 7, v{vI}
        v_lshl_add_u32 v{vXE}, v200, 4, v{vXE}
        v_xor_b32 v{vXE+1}, 64, v{vXE}
        v_add_u32 v{vXE+2}, 40960, v{vXE}
        v_add_u32 v{vXE+3}, 40960, v{vXE+1}
        v_and_b32 v200, 1, v1
        v_lshlrev_b32 v200, 6, v200
        v_xor_b32 v{vSB}, v200, v{vXE}
        v_lshrrev_b32 v200, 1, v1
        v_mul_u32_u24 v200, 10240, v200
        v_add_u32 v{vSB}, v{vSB}, v200
        v_add_u32 v{vSB+1}, 40960, v{vSB}
        v_lshlrev_b32 v{vF0}, 4, v2
        v_add_u32 v{vF1}, 65536, v{vF0}
        v_lshl_add_u32 v{vTW}, v1, 12, v{vF0}
        v_add_u32 v{vTW+1}, 16384, v{vTW}
        v_add_u32 v{vTW+2}, 32768, v{vTW}
        v_add_u32 v{vTW+3}, 49152, v{vTW}
        v_add_u32 v{vTW+4}, 65536, v{vTW}
        s_mul_i32 s23, s6, {GB}
        ''')
        for k in range(4):
            P(f'v_mov_b32 v{vONE+k}, 0x3f803f80\n v_mov_b32 v{self.vSENT+k}, -1')
        P(f'''
        s_lshl_b32 s16, s7, 11
        s_lshl_b32 s17, s8, 9
        s_add_u32 s16, s16, s17
        v_lshrrev_b32 v200, 1, v{vG}
        v_lshlrev_b32 v200, 8, v200
        v_lshl_add_u32 v200, v{vI}, 4, v200
        v_add_u32 v200, s16, v200
        v_and_b32 v201, 1, v{vG}
        v_lshl_add_u32 v{vSTP}, v201, 14, v200
        v_lshl_add_u32 v{vSTS}, v201, 30, v200
        v_mov_b32 v202, {OOB}
        s_cmp_eq_u32 s6, 0
        s_cselect_b32 s16, 0, 7
        v_lshl_add_u32 v203, v201, 4, v{vI}
        v_cmp_gt_u32 vcc, s16, v203
        v_cndmask_b32 v{vSTX}, v{vSTP}, v202, vcc
        v_cmp_gt_u32 vcc, 9, v{vI}
        v_subrev_u32 v203, 144, v{vSTS}
        v_cndmask_b32 v{vSTH}, v203, v202, vcc
        ''')
        P(f'''
        v_and_b32 v200, 3, v{vI}
        v_cmp_eq_u32 s[64:65], 1, v200
        v_cmp_eq_u32 s[66:67], 2, v200
        v_cmp_eq_u32 s[68:69], 3, v200
        v_lshrrev_b32 v200, 2, v{vI}
        v_cmp_eq_u32 s[70:71], v200, v{vG}
        v_lshlrev_b32 v{vCL}, 2, v{vI}
        v_add_u32 v{vCL}, {COEF}, v{vCL}
        v_lshlrev_b32 v{vCR}, 4, v{vG}
        v_add_u32 v{vCR}, {COEF}, v{vCR}
        v_mul_u32_u24 v{vPA}, 1280, v1
        v_lshl_add_u32 v{vPA}, v{vI}, 4, v{vPA}
        v_add_u32 v{vPA}, {PART}, v{vPA}
        ''')
        P(f'''
        v_mov_b32 v204, 0xf149f2ca
        v_lshlrev_b32 v205, 2, v{vG}
        v_sub_u32 v205, v{vI}, v205
        v_add_u32 v206, s11, v{vI}
        v_and_b32 v207, 1023, v206
        v_min_u32 v207, 7, v207
        v_add_u32 v206, 64, v206
        v_and_b32 v208, 1023, v206
        v_min_u32 v208, 7, v208
        ''')
        for r in range(4):
            P(f'''
            v_subrev_u32 v200, {r}, v205
            v_add_u32 v201, 16, v200
            v_cmp_lt_u32 vcc, v207, v200
            v_cndmask_b32 v{vB0+r}, 0, v204, vcc
            v_cmp_lt_u32 vcc, 7, v200
            v_cndmask_b32 v{vBDC+r}, 0, v204, vcc
            v_cmp_lt_u32 vcc, 7, v201
            v_cndmask_b32 v{vBDP+r}, 0, v204, vcc
            v_cmp_lt_u32 vcc, v208, v200
            v_cndmask_b32 v{vB4C+r}, 0, v204, vcc
            v_cmp_lt_u32 vcc, v208, v201
            v_cndmask_b32 v{vB4P+r}, 0, v204, vcc
            v_ashrrev_i32 v{220+r}, 31, v200
            ''')
        P(f'''
        v_mov_b32 v200, 0xffff
        v_bfi_b32 v{vMC}, v200, v220, v221
        v_bfi_b32 v{vMC+1}, v200, v222, v223
        v_not_b32 v{vMC}, v{vMC}
        v_not_b32 v{vMC+1}, v{vMC+1}
        ''')

    def finish_af(self):
        P = self.P
        P(f'v_and_b32 v200, 3, v{vI}\n v_cmp_eq_u32 vcc, 0, v200')
        for k in range(16):
            P(f'v_cndmask_b32 v{vAF+k}, v{vAF+k}, v{vONE}, vcc')
        for u in range(4):
            P(f'v_mfma_f32_16x16x32_bf16 v[200:203], {vr(vAF+4*u)}, {vr(vONE)}, {"v[200:203]" if u else 0}')
        P(f'v_mov_b32 v{vSW}, v201')

    def coef1(self):
        P = self.P
        P(f'''
        v_min_u32 v200, 79, v0
        v_lshlrev_b32 v201, 4, v200
        v_add_u32 v201, {PART}, v201
        ds_read_b64 v[202:203], v201
        ds_read_b64 v[204:205], v201 offset:1280
        ds_read_b64 v[206:207], v201 offset:2560
        ds_read_b64 v[208:209], v201 offset:3840
        v_lshlrev_b32 v200, 2, v200
        v_add_u32 v200, {COEF}, v200
        s_waitcnt lgkmcnt(0)
        v_pk_add_f32 v[202:203], v[202:203], v[204:205]
        v_pk_add_f32 v[206:207], v[206:207], v[208:209]
        v_pk_add_f32 v[202:203], v[202:203], v[206:207]
        ''')
        self.mu_var(202, 203, 204, 205)
        self.ms_chain(204, 205, 206, 207, 208)
        P(f'''
        v_mul_f32 v209, v206, v208
        v_sub_f32 v209, 0, v209
        ds_write2_b32 v200, v208, v209 offset0:0 offset1:80
        s_waitcnt lgkmcnt(0)
        s_barrier
        ''')

    def attention(self, tiles, mc, obase, stores):
        P = self.P
        CO = WK; QP = WK + 50; KP = QP + 10; VP = KP + 10; OP = WK + 80
        P(f's_mov_b32 s16, 0x3eb8aa3b')
        for (T, hq, pv, bc, bp) in tiles:
            c = CO + 10*T
            P(f'''
            ds_read2_b32 {vr(c,2)}, v{vCL} offset0:{T*16} offset1:{T*16+80}
            ds_read_b128 {vr(c+2)}, v{vCR} offset:{T*64}
            ds_read_b128 {vr(c+6)}, v{vCR} offset:{T*64+320}
            ''')
        n = len(tiles)
        for idx, (T, hq, pv, bc, bp) in enumerate(tiles):
            c = CO + 10*T; a = ACC + 12*T
            P(f's_waitcnt lgkmcnt({3*(n-1-idx)})')
            for seg in ((0, 1) if hq else (1,)):
                for h in range(2):
                    x = a + 4*seg + 2*h
                    P(f'''
                    v_pk_mul_f32 {vr(x,2)}, {vr(x,2)}, {vr(c,2)} op_sel_hi:[1,0]
                    v_pk_fma_f32 {vr(x,2)}, {vr(vCS+4*seg+2*h,2)}, {vr(c,2)}, {vr(x,2)} op_sel:[0,1,0] op_sel_hi:[1,1,1]
                    ''')
            for h in range(2):
                x = a + 8 + 2*h
                P(f'''
                v_pk_mul_f32 {vr(x,2)}, {vr(x,2)}, {vr(c+2+2*h,2)}
                v_pk_fma_f32 {vr(x,2)}, {vr(vCS+8,2)}, {vr(c+6+2*h,2)}, {vr(x,2)}
                ''')
            for seg, dst in ((0, QP), (1, KP), (2, VP)):
                if seg == 0 and not hq: continue
                for h in range(2):
                    x = a + 4*seg + 2*h
                    P(f'v_cvt_pk_bf16_f32 v{dst+2*T+h}, v{x}, v{x+1}')
        q = [t for t in tiles if t[1]]
        for (T, hq, pv, bc, bp) in q:
            a = ACC + 12*T
            P(f'v_mfma_f32_16x16x16_bf16 {vr(a)}, {vr(KP+2*T,2)}, {vr(QP+2*T,2)}, {vr(bc)}')
            if pv is not None:
                P(f'v_mfma_f32_16x16x16_bf16 {vr(a+4)}, {vr(KP+2*pv,2)}, {vr(QP+2*T,2)}, {vr(bp)}')
        for (T, hq, pv, bc, bp) in q:
            a = ACC + 12*T; m = CO + 10*T
            if pv is not None:
                for r in range(4): P(f'v_max_f32 v{a+r}, v{a+r}, v{a+4+r}')
            P(f'v_max3_f32 v{m}, v{a}, v{a+1}, v{a+2}\n v_max_f32 v{m}, v{m}, v{a+3}\n v_mov_b32 v{m+1}, v{m}')
        for sw in ('v_permlane16_swap_b32', 'v_permlane32_swap_b32'):
            for (T, *_) in q:
                m = CO + 10*T; P(f'{sw} v{m}, v{m+1}')
            for (T, *_) in q:
                m = CO + 10*T
                P(f'v_max_f32 v{m}, v{m}, v{m+1}')
                if sw.startswith('v_permlane16'): P(f'v_mov_b32 v{m+1}, v{m}')
        for (T, *_) in q:
            a = ACC + 12*T; m = CO + 10*T
            P(f'v_mul_f32 v{m}, s16, v{m}')
            for r in range(4): P(f'v_fma_f32 v{a+r}, v{a+r}, s16, -v{m}')
            for r in range(4): P(f'v_exp_f32 v{a+r}, v{a+r}')
        for (T, hq, pv, bc, bp) in q:
            a = ACC + 12*T; m = CO + 10*T
            P(f'v_cvt_pk_bf16_f32 v{m+2}, v{a}, v{a+1}\n v_cvt_pk_bf16_f32 v{m+3}, v{a+2}, v{a+3}')
            if pv is not None:
                P(f'''
                v_and_b32 v{a+10}, v{mc}, v{m+2}
                v_and_b32 v{a+11}, v{mc+1}, v{m+3}
                v_xor_b32 v{a+8}, v{a+10}, v{m+2}
                v_xor_b32 v{a+9}, v{a+11}, v{m+3}
                ''')
        for (T, hq, pv, bc, bp) in q:
            a = ACC + 12*T; m = CO + 10*T
            P(f'v_mfma_f32_16x16x16_bf16 {vr(a+4)}, {vr(vONE,2)}, {vr(m+2,2)}, 0')
            if pv is not None:
                assert pv == T - 1
                P(f'v_mfma_f32_16x16x32_bf16 {vr(a)}, {vr(VP+2*pv)}, {vr(a+8)}, 0')
            else:
                P(f'v_mfma_f32_16x16x16_bf16 {vr(a)}, {vr(VP+2*T,2)}, {vr(m+2,2)}, 0')
        for (T, *_) in q:
            a = ACC + 12*T
            P(f'v_rcp_f32 v{a+4}, v{a+4}')
        for (TA, TB, voff, dT) in stores:
            o = OP + 4*(TA // 2)
            for k, T in enumerate((TA, TB)):
                if T is None: continue
                a = ACC + 12*T
                P(f'''
                v_pk_mul_f32 {vr(a,2)}, {vr(a,2)}, {vr(a+4,2)} op_sel_hi:[1,0]
                v_pk_mul_f32 {vr(a+2,2)}, {vr(a+2,2)}, {vr(a+4,2)} op_sel_hi:[1,0]
                v_cvt_pk_bf16_f32 v{o+2*k}, v{a}, v{a+1}
                v_cvt_pk_bf16_f32 v{o+2*k+1}, v{a+2}, v{a+3}
                ''')
            self.pack_store(o, [(voff, obase + dT*16384)])

    def pack_store(self, o, dests):
        P = self.P
        P(f'''
        v_permlane16_swap_b32 v{o}, v{o+2}
        v_permlane16_swap_b32 v{o+1}, v{o+3}
        v_min_u32 v{o}, -2, v{o}
        ''')
        for voff, off in dests:
            P(f's_add_u32 s18, s23, {off}\n buffer_store_dwordx4 {vr(o)}, v{voff}, {SWS}, s18 offen sc1')
            self.vm.issue('st')

    def stage_loads(self, tiles, soffs, R, vbase=None):
        for k, T in enumerate(tiles):
            for u in range(4):
                s, imm = soffs[u]
                v = vTW + T if vbase is None else vbase
                self.P(f'buffer_load_dwordx4 {vr(R+16*k+4*u)}, v{v}, {SWS}, {s} offen offset:{imm} sc1')

    def stage(self, tiles, soffs, R, vbase=None, to_lds=True, t=252):
        P = self.P
        L = self.spin_begin()
        self.stage_loads(tiles, soffs, R, vbase)
        n = len(tiles)
        P(f'v_mov_b32 v{t}, 0')
        for k in range(n):
            P(f's_waitcnt vmcnt({4*(n-1-k)})')
            b = R + 16*k
            P(f'v_max3_u32 v{t}, v{t}, v{b}, v{b+4}\n v_max3_u32 v{t}, v{t}, v{b+8}, v{b+12}')
            if to_lds:
                for u in range(4):
                    P(f'ds_write_b128 v{vTW+tiles[k]}, {vr(b+4*u)} offset:{u*1024}')
        P(f'v_cmp_eq_u32 vcc, -1, v{t}')
        self.spin_end_vcc(L)
        self.vm.reset()

    def soffs_nat(self, base):
        self.P(f's_add_u32 s26, s23, {base}')
        return [('s26', u*1024) for u in range(4)]

    def soffs_rot(self, base, extra=None):
        P = self.P
        for k, s in enumerate(('s26', 's27')):
            P(f'''
            s_lshl_b32 s16, s8, 2
            s_add_u32 s17, s16, s9
            s_add_u32 s17, s17, {2*k}
            s_and_b32 s17, s17, 15
            s_sub_u32 s17, s17, s16
            s_lshl_b32 s17, s17, 10
            s_add_u32 {s}, s17, {base}
            ''')
            if extra: P(f's_add_u32 {s}, {s}, {extra}')
        return [('s26', 0), ('s26', 1024), ('s27', 0), ('s27', 1024)]

    def wo_frags(self):
        P = self.P
        for ks in range(16):
            p = 16 + ks // 3; seg = ks % 3
            for a in range(2):
                P(f'ds_read_b64_tr_b16 {ar(192+4*ks+2*a,2)}, v{vTR} offset:{(p%6)*12288+seg*1024+a*512}')
                if (2*ks+a) % 12 == 11: P('s_waitcnt lgkmcnt(4)')
        P('s_waitcnt lgkmcnt(0)')

    def gemm_tiles(self, tiles, emit_mfma, FR, depth=6, after_tile=None):
        P = self.P
        seq = [(T, p) for T in tiles for p in range(16)]
        def rd(k):
            T, p = seq[k]
            v = vF0 if T < 4 else vF1
            P(f'ds_read_b128 {vr(FR+4*(k%(depth+1)))}, v{v} offset:{(T%4)*16384+p*1024}')
        for k in range(depth): rd(k)
        for k, (T, p) in enumerate(seq):
            out = min(depth-1, len(seq)-1-k)
            P(f's_waitcnt lgkmcnt({out})')
            emit_mfma(T, p, FR+4*(k % (depth+1)), lambda: rd(k+depth) if k+depth < len(seq) else None)
            if p == 15 and after_tile: after_tile(T)

    def qkv2(self, tiles, noq=()):
        P = self.P
        def em(T, p, f, rd):
            first = True
            for seg in range(3):
                if seg == 0 and T in noq: continue
                a = ar((p*3+seg)*4); x = vr(f); d = vr(ACC+(T*3+seg)*4); c = d if p else '0'
                P(f'v_mfma_f32_16x16x32_bf16 {d}, {a}, {x}, {c}' if seg < 2 else f'v_mfma_f32_16x16x32_bf16 {d}, {x}, {a}, {c}')
                if first: rd(); first = False
        self.gemm_tiles(tiles, em, WK, depth=4)

    def wo_phase(self, order, stores, xbase, keep):
        P = self.P
        OP = WK + 80
        def em(T, p, f, rd):
            d = vr(ACC+4*T); c = d if p else '0'
            P(f'v_mfma_f32_16x16x32_bf16 {d}, {ar(192+4*p)}, {vr(f)}, {c}')
            rd()
        pend = []
        def epi(T):
            a = ACC + 4*T; t = ACC + 24; r = vRES + 2*T
            TA, TB, dests = None, None, None
            for key, val in stores.items():
                if T in val[:2]: TA, TB, dests = val; last = key
            o = OP + 4*(TA // 2) + (0 if T == TA else 2)
            P(f'''
            v_cvt_pk_bf16_f32 v{t}, v{a}, v{a+1}
            v_cvt_pk_bf16_f32 v{t+1}, v{a+2}, v{a+3}
            v_lshlrev_b32 v{a}, 16, v{t}
            v_and_b32 v{a+1}, 0xffff0000, v{t}
            v_lshlrev_b32 v{a+2}, 16, v{t+1}
            v_and_b32 v{a+3}, 0xffff0000, v{t+1}
            v_lshlrev_b32 v{t+2}, 16, v{r}
            v_and_b32 v{t+3}, 0xffff0000, v{r}
            v_lshlrev_b32 v{t+4}, 16, v{r+1}
            v_and_b32 v{t+5}, 0xffff0000, v{r+1}
            v_pk_add_f32 {vr(a,2)}, {vr(a,2)}, {vr(t+2,2)}
            v_pk_add_f32 {vr(a+2,2)}, {vr(a+2,2)}, {vr(t+4,2)}
            v_cvt_pk_bf16_f32 v{o}, v{a}, v{a+1}
            v_cvt_pk_bf16_f32 v{o+1}, v{a+2}, v{a+3}
            ''')
            if keep: P(f'v_mov_b32 v{r}, v{o}\n v_mov_b32 v{r+1}, v{o+1}')
            if T == last:
                self.pack_store(OP + 4*(TA // 2), [(v, xbase + dT*16384) for v, dT in dests])
        self.gemm_tiles(order, em, WK, depth=8, after_tile=epi)

    def tile_stats(self, R, t):
        P = self.P
        for u in range(4):
            x = vr(R+4*u)
            P(f'v_mfma_f32_16x16x32_bf16 {vr(t)}, {x}, {x}, {vr(t) if u else 0}')
            P(f'v_mfma_f32_16x16x32_bf16 {vr(t+4)}, {vr(vAF+4*u)}, {x}, {vr(t+4) if u else 0}')
        P(f'''
        v_cndmask_b32 v{t}, v{t}, v{t+1}, s[64:65]
        v_cndmask_b32 v{t}, v{t}, v{t+2}, s[66:67]
        v_cndmask_b32 v{t}, v{t}, v{t+3}, s[68:69]
        v_mov_b32 v{t+1}, v{t+4}
        v_mov_b32 v{t+2}, v{t+5}
        v_mov_b32 v{t+3}, v{vSW}
        s_mov_b64 exec, s[70:71]
        ds_write_b128 v{vPA}, {vr(t)}
        s_mov_b64 exec, -1
        v_lshlrev_b32 v{t+16}, 4, v{vI}
        v_add_u32 v{t+16}, {PART}, v{t+16}
        s_waitcnt lgkmcnt(0)
        s_barrier
        ds_read_b128 {vr(t)}, v{t+16}
        ds_read_b128 {vr(t+4)}, v{t+16} offset:1280
        ds_read_b128 {vr(t+8)}, v{t+16} offset:2560
        ds_read_b128 {vr(t+12)}, v{t+16} offset:3840
        s_waitcnt lgkmcnt(0)
        ''')
        for a, b in ((0, 4), (8, 12), (0, 8)):
            P(f'v_pk_add_f32 {vr(t+a,2)}, {vr(t+a,2)}, {vr(t+b,2)}\n v_pk_add_f32 {vr(t+a+2,2)}, {vr(t+a+2,2)}, {vr(t+b+2,2)}')

    def publish_rows(self, t, layer2, rg, cand, tidx, vvalid):
        P = self.P
        mu, var, m, s, rs = t+4, t+5, t+6, t+7, t+8
        self.mu_var(t, t+1, mu, var)
        self.ms_chain(mu, var, m, s, rs)
        k1, k2 = t+12, t+13
        P(f'''
        v_fma_f32 v{t+9}, -v{m}, v{t+3}, v{t+2}
        v_mul_f32 v{t+9}, v{t+9}, v{rs}
        v_ashrrev_i32 v{t+10}, 31, v{t+9}
        v_or_b32 v{t+10}, 0x80000000, v{t+10}
        v_xor_b32 v{t+9}, v{t+9}, v{t+10}
        s_lshl_b32 s16, {tidx}, 4
        v_add_u32 v{t+10}, s16, v{vI}
        v_or_b32 v{t+9}, 0xfff, v{t+9}
        v_xor_b32 v{t+9}, v{t+9}, v{t+10}
        v_cndmask_b32 v{k1}, 0, v{t+9}, {vvalid}
        v_mov_b32 v{k2}, 0
        ''')
        self.top2_row(k1, k2, t+14)
        P(f'''
        v_mov_b32 v{t+15}, {TAG}
        v_mov_b32 v{t+11}, {OOB}
        v_cmp_eq_u32 vcc, 0, v0
        v_cndmask_b32 v{t+11}, v{t+11}, v0, vcc
        s_add_u32 s17, s16, {cand}
        buffer_store_dwordx4 {vr(k1)}, v{t+11}, {SWS}, s17 offen sc1
        ''')
        g = t + 16
        if layer2:
            a, mr = t+9, t+10
            P(f'''
            v_add_f32 v{a}, 1.0, v{rs}
            v_mul_f32 v{mr}, v{m}, v{rs}
            v_fma_f32 v{mu}, v{a}, v{mu}, -v{mr}
            v_mul_f32 v{var}, v{a}, v{var}
            v_mul_f32 v{var}, v{a}, v{var}
            ''')
            self.ms_chain(mu, var, t+20, t+21, t+22)
            P(f'''
            v_mul_f32 v{g}, v{a}, v{t+22}
            v_add_f32 v{mr}, v{mr}, v{t+20}
            v_mul_f32 v{g+1}, -v{mr}, v{t+22}
            ''')
        P(f'''
        v_lshrrev_b32 v{g+2}, 16, v{m}
        v_or_b32 v{g+2}, v{g+2}, v{s}
        v_mov_b32 v{g+3}, {TAG}
        v_mov_b32 v{t+11}, {OOB}
        v_cmp_gt_u32 vcc, 16, v0
        v_cndmask_b32 v{t+11}, v{t+11}, v{vF0}, vcc
        s_lshl_b32 s17, s16, 4
        s_add_u32 s17, s17, {rg}
        buffer_store_dwordx4 {vr(g)}, v{t+11}, {SWS}, s17 offen sc1
        ''')

    def ln_pair(self, x, m, rs, lo, h=None):
        P = self.P
        P(f'''
        v_lshlrev_b32 v{lo}, 16, v{x}
        v_and_b32 v{lo+1}, 0xffff0000, v{x}
        v_sub_f32 v{lo+2}, v{lo}, v{m}
        v_sub_f32 v{lo+3}, v{lo+1}, v{m}
        v_cvt_pk_bf16_f32 v{lo+3}, v{lo+2}, v{lo+3}
        v_lshlrev_b32 v{lo+2}, 16, v{lo+3}
        v_and_b32 v{lo+3}, 0xffff0000, v{lo+3}
        v_mul_f32 v{lo+2}, v{lo+2}, v{rs}
        v_mul_f32 v{lo+3}, v{lo+3}, v{rs}
        ''')
        hh = h if h is not None else lo+3
        P(f'v_cvt_pk_bf16_f32 v{hh}, v{lo+2}, v{lo+3}')
        P(f'v_lshlrev_b32 v{lo+2}, 16, v{hh}\n v_and_b32 v{lo+3}, 0xffff0000, v{hh}')

    def x_plus_ln(self, x, m, rs, lo, dst):
        self.ln_pair(x, m, rs, lo)
        self.P(f'v_pk_add_f32 {vr(lo,2)}, {vr(lo,2)}, {vr(lo+2,2)}\n v_cvt_pk_bf16_f32 v{dst}, v{lo}, v{lo+1}')

    def poll_sel(self, addr, t):
        P = self.P
        P(f'v_mov_b32 v{t+4}, 0\n s_mov_b32 s33, {addr}')
        L = self.spin_begin()
        P(f'''
        buffer_load_dwordx4 {vr(t)}, v{t+4}, {SWS}, s33 offen sc1
        s_waitcnt vmcnt(0)
        v_cmp_ne_u32 vcc, {TAG}, v{t+3}
        ''')
        self.spin_end_vcc(L)
        P(f'v_readfirstlane_b32 s30, v{t}\n v_readfirstlane_b32 s31, v{t+1}')

    def final_stage(self, fix):
        P = self.P
        R = WK; t = WK + 16
        P(f's_lshl_b32 s24, s28, 14\n s_add_u32 s24, s24, s23')
        so = self.soffs_rot(X3, 's24')
        self.stage([0], so, R, to_lds=False)
        self.stamp(13)
        self.tile_stats(R, t)
        self.publish_rows(t, False, RG3, CAND2, 's29', 's[36:37]')
        self.stamp(14)
        for k in range(16):
            self.x_plus_ln(R+k, t+6, t+8, t+24 + 4*(k & 3), R+k)
        self.poll_sel(SEL2, t+44)
        P(f'''
        v_cmp_ne_u32 vcc, s30, v250
        s_and_b64 s[36:37], s[36:37], vcc
        v_cmp_ne_u32 vcc, s31, v250
        s_and_b64 s[36:37], s[36:37], vcc
        v_and_b32 v{t}, 1023, v250
        v_lshlrev_b32 v{t}, 11, v{t}
        v_bfe_u32 v{t+1}, v250, 10, 1
        v_lshl_or_b32 v{t}, v{t+1}, 10, v{t}
        v_lshl_or_b32 v{t}, v{vG}, 4, v{t}
        v_mov_b32 v{t+1}, {OOB}
        v_cndmask_b32 v{t}, v{t+1}, v{t}, s[36:37]
        ''')
        for u in range(4):
            P(f'''
            s_lshl_b32 s16, s8, 2
            s_add_u32 s16, s16, s9
            s_add_u32 s16, s16, {u}
            s_and_b32 s16, s16, 15
            s_lshl_b32 s16, s16, 6
            buffer_store_dwordx4 {vr(R+4*u)}, v{t}, {SOUT}, s16 offen sc1
            ''')
        self.stamp(15)

    def flags_voff(self, dst, both):
        P = self.P
        if both:
            P(f'''
            s_cmp_eq_u32 s6, 0
            s_cselect_b32 s16, 7, 15
            s_cselect_b32 s17, 0, 8
            v_and_b32 v{dst}, s16, v2
            s_lshl_b32 s16, s6, 3
            s_sub_u32 s16, s16, s17
            v_add_u32 v{dst}, s16, v{dst}
            v_lshlrev_b32 v{dst}, 2, v{dst}
            ''')
        else:
            P(f'''
            v_and_b32 v{dst}, 7, v2
            s_lshl_b32 s16, s6, 3
            v_add_u32 v{dst}, s16, v{dst}
            v_lshlrev_b32 v{dst}, 2, v{dst}
            ''')

    def role_a(self):
        P = self.P; vm = self.vm
        tiles = [(0, True, None, vB0, None), (1, True, 0, vBDC, vBDP), (2, True, 1, vBDC, vBDP), (3, True, 2, vBDC, vBDP), (4, True, 3, vB4C, vB4P)]
        ost = [(4, None, vSTS, 4), (0, 1, vSTP, 0), (2, 3, vSTP, 2)]
        self.coef1()
        self.stamp(3)
        self.attention(tiles, vMC, O1, ost)
        self.stamp(4)
        self.flags_voff(200, True)
        P(f's_mov_b32 s33, {CLR1}')
        self.check_flags(200, 's33', 201)
        P('s_barrier')
        self.wo_frags()
        self.finish_af()
        self.stage([4, 0, 1, 2, 3], self.soffs_nat(O1), WK)
        P('s_waitcnt lgkmcnt(0)\n s_barrier')
        self.stamp(5)
        self.wo_phase([4, 0, 1, 2, 3], {4: (4, None, [(vSTS, 4), (vSTH, 5)]), 1: (0, 1, [(vSTX, 0)]), 3: (2, 3, [(vSTP, 2)])}, X1, True)
        P('s_barrier')
        self.stamp(6)
        so = self.soffs_rot(X1, 's23')
        self.stage([4, 0, 1, 2, 3], so, WK)
        self.stamp(7)
        P(f'''
        s_mul_i32 s29, s6, 5
        s_add_u32 s29, s29, s7
        s_lshl_b32 s16, s7, 4
        v_add_u32 v251, s16, v{vI}
        v_add_u32 v250, s11, v251
        s_cmp_eq_u32 s6, 0
        s_cselect_b32 s16, 0, 7
        v_cmp_le_u32 s[36:37], s16, v251
        v_cmp_gt_u32 vcc, 0x800, v250
        s_and_b64 s[36:37], s[36:37], vcc
        s_cmp_ge_u32 s7, 5
        s_cbranch_scc1 L_a_nostat
        s_lshl_b32 s16, s7, 14
        v_add_u32 v200, s16, v{vTW}
        s_waitcnt lgkmcnt(0)
        ''')
        for u in range(4): P(f'ds_read_b128 {vr(WK+4*u)}, v200 offset:{u*1024}')
        P('s_waitcnt lgkmcnt(0)')
        self.tile_stats(WK, WK+16)
        self.publish_rows(WK+16, True, RG1, CAND1, 's29', 's[36:37]')
        P('s_branch L_a_stat_done\n L_a_nostat:\n s_waitcnt lgkmcnt(0)\n s_barrier\n L_a_stat_done:')
        self.stamp(8)
        self.vSENT = 236
        for k in range(4): P(f'v_mov_b32 v{236+k}, -1')
        for g in self.clears(O2, X3): P.emit_items(g)
        self.qkv2([0, 1, 2, 3, 4])
        P('s_waitcnt vmcnt(0)\n s_barrier')
        self.set_flag(CLR2)
        self.stamp(9)
        P(f'''
        v_min_u32 v200, 79, v0
        v_lshlrev_b32 v201, 4, v200
        v_lshlrev_b32 v200, 2, v200
        v_add_u32 v200, {COEF}, v200
        s_mul_i32 s33, s6, 1280
        s_add_u32 s33, s33, {RG1}
        ''')
        L = self.spin_begin()
        P(f'''
        buffer_load_dwordx4 v[204:207], v201, {SWS}, s33 offen sc1
        s_waitcnt vmcnt(0)
        v_cmp_ne_u32 vcc, {TAG}, v207
        ''')
        self.spin_end_vcc(L)
        P(f'''
        ds_write2_b32 v200, v204, v205 offset0:0 offset1:80
        ds_write_b32 v200, v206 offset:640
        s_waitcnt lgkmcnt(0)
        s_barrier
        ''')
        self.attention(tiles, vMC, O2, ost)
        self.stamp(10)
        for T in range(5): P(f'ds_read_b32 v{200+T}, v{vCL} offset:{640+T*64}')
        P('s_waitcnt lgkmcnt(0)')
        for T in range(5):
            P(f'v_lshlrev_b32 v206, 16, v{200+T}\n v_and_b32 v207, 0xffff0000, v{200+T}\n v_rcp_f32 v207, v207')
            for h in range(2): self.x_plus_ln(vRES+2*T+h, 206, 207, 208+4*h, vRES+2*T+h)
        self.flags_voff(200, False)
        P(f's_mov_b32 s33, {CLR2}')
        self.check_flags(200, 's33', 201)
        self.stage([4, 0, 1, 2, 3], self.soffs_nat(O2), WK)
        P('s_waitcnt lgkmcnt(0)\n s_barrier')
        self.stamp(11)
        self.wo_phase([4, 0, 1, 2, 3], {4: (4, None, [(vSTS, 4)]), 1: (0, 1, [(vSTP, 0)]), 3: (2, 3, [(vSTP, 2)])}, X3, False)
        self.stamp(12)
        P('s_cmp_ge_u32 s7, 5\n s_cbranch_scc1 L_fin')
        self.poll_sel(SEL1, 200)
        P(f'''
        v_subrev_u32 v200, s30, v250
        v_subrev_u32 v201, s31, v250
        v_min_u32 v200, v200, v201
        v_cmp_lt_u32 vcc, 7, v200
        s_and_b64 s[36:37], s[36:37], vcc
        s_mov_b32 s28, s7
        L_stage:
        ''')
        self.final_stage(False)
        P('s_branch L_fin')

    def role_fix(self):
        P = self.P
        P('L_fix:')
        self.vSENT = 236
        for k in range(4): P(f'v_mov_b32 v{236+k}, -1')
        for b in (O2, X3):
            P(f's_add_u32 s18, s23, {b}\n buffer_store_dwordx4 {vr(236)}, v{vSTS}, {SWS}, s18 offen sc1')
        P('s_waitcnt vmcnt(0)\n s_barrier')
        self.set_flag(CLR2)
        self.wo_frags()
        self.finish_af()
        P(f'v_min_u32 v200, {NF-1}, v2\n v_lshlrev_b32 v200, 2, v200\n s_mov_b32 s33, {TCLR}')
        self.check_flags(200, 's33', 201)
        self.flags_voff(200, False)
        P(f's_mov_b32 s33, {CLR2}')
        self.check_flags(200, 's33', 201)
        self.stamp(3)
        self.poll_cands(CAND1, 140, WK)
        self.stamp(4)
        self.key_to_loc('s32', 's30'); self.loc_to_vpos('s74', 's32', 's16')
        self.key_to_loc('s32', 's31'); self.loc_to_vpos('s75', 's32', 's16')
        P(f'''
        v_and_b32 v200, 1, v2
        v_cmp_eq_u32 vcc, 1, v200
        v_mov_b32 v201, s30
        v_mov_b32 v202, s31
        v_cndmask_b32 v201, v201, v202, vcc
        ''')
        self.sigmoid_from_key(201, 249, 202)
        P(f'''
        v_cmp_lt_u32 vcc, 7, v{vI}
        v_mov_b32 v200, s74
        v_mov_b32 v201, s75
        v_cndmask_b32 v200, v200, v201, vcc
        v_and_b32 v201, 7, v{vI}
        v_add_u32 v250, v200, v201
        v_subrev_u32 v248, 8, v250
        ''')
        def lin(dst, p):
            P(f'''
            v_max_i32 v202, 0, v{p}
            v_min_i32 v202, 0x7ff, v202
            v_subrev_u32 v203, 7, v202
            v_max_i32 v203, 0, v203
            v_mul_u32_u24 v203, 898, v203
            v_lshrrev_b32 v203, 16, v203
            v_mul_u32_u24 v203, 7, v203
            v_add_u32 v{dst}, v202, v203
            ''')
        lin(204, 248); lin(205, 250)
        for s, d in ((204, 206), (205, 207)):
            P(f'''
            v_lshrrev_b32 v202, 4, v{s}
            v_lshlrev_b32 v202, 14, v202
            v_and_b32 v203, 15, v{s}
            v_lshl_add_u32 v202, v203, 4, v202
            v_lshl_add_u32 v202, v{vG}, 8, v202
            v_lshl_add_u32 v{d}, v1, 12, v202
            ''')
        so = self.soffs_rot(X1)
        self.stage_loads([0], so, WK, vbase=206)
        self.stage_loads([0], so, WK+16, vbase=207)
        P(f'''
        v_and_b32 v202, 1, v{vG}
        v_cmp_eq_u32 vcc, 1, v202
        v_cndmask_b32 v203, v204, v205, vcc
        v_lshlrev_b32 v203, 4, v203
        s_mov_b32 s33, {RG1}
        buffer_load_dwordx4 v[208:211], v203, {SWS}, s33 offen sc1
        v_cndmask_b32 v212, v248, v250, vcc
        v_and_b32 v213, 31, v2
        v_lshlrev_b32 v213, 2, v213
        v_add_u32 v213, {COEF}, v213
        ''')
        P(f'''
        v_mov_b32 v214, 0xf149f2ca
        v_and_b32 v215, 1023, v250
        v_min_u32 v215, 7, v215
        v_and_b32 v216, 1, v{vG}
        v_lshlrev_b32 v216, 2, v216
        v_sub_u32 v216, v201, v216
        v_lshrrev_b32 v217, 1, v{vG}
        v_lshrrev_b32 v218, 3, v{vI}
        v_xor_b32 v217, v217, v218
        v_lshlrev_b32 v217, 6, v217
        ''')
        for r in range(4):
            P(f'''
            v_subrev_u32 v218, {r}, v216
            v_ashrrev_i32 v{220+r}, 31, v218
            v_add_u32 v218, v218, v217
            v_add_u32 v219, 8, v218
            v_cmp_lt_u32 vcc, v215, v218
            v_cndmask_b32 v{vBDC+r}, 0, v214, vcc
            v_cmp_lt_u32 vcc, v215, v219
            v_cndmask_b32 v{vBDP+r}, 0, v214, vcc
            ''')
        P(f'''
        v_mov_b32 v218, 0xffff
        v_bfi_b32 v{vMC}, v218, v220, v221
        v_bfi_b32 v{vMC+1}, v218, v222, v223
        v_not_b32 v{vMC}, v{vMC}
        v_not_b32 v{vMC+1}, v{vMC+1}
        ''')
        L = self.spin_begin()
        P(f'''
        s_waitcnt vmcnt(0)
        v_cmp_ne_u32 vcc, {TAG}, v211
        s_cbranch_vccz L_fix_rg_ok
        buffer_load_dwordx4 v[208:211], v203, {SWS}, s33 offen sc1
        s_sub_u32 s39, s39, 1
        s_cbranch_scc0 {L}
        s_waitcnt vmcnt(0)
        L_fix_rg_ok:
        ''')
        for k in range(2):
            for u in range(4): P(f'ds_write_b128 v{vTW+k}, {vr(WK+16*k+4*u)} offset:{u*1024}')
        P(f'''
        ds_write2_b32 v213, v208, v209 offset0:0 offset1:80
        ds_write_b32 v213, v210 offset:640
        s_waitcnt lgkmcnt(0)
        s_barrier
        ''')
        P(f'''
        v_lshrrev_b32 v200, 2, v{vI}
        v_lshl_add_u32 v200, v1, 2, v200
        v_subrev_u32 v200, s9, v200
        v_and_b32 v200, 15, v200
        v_lshlrev_b32 v200, 10, v200
        v_bfe_u32 v201, v{vI}, 1, 1
        v_lshrrev_b32 v202, 1, v{vG}
        v_lshl_add_u32 v201, v201, 1, v202
        v_lshl_add_u32 v200, v201, 8, v200
        v_and_b32 v201, 1, v{vG}
        v_lshl_add_u32 v247, v201, 3, v200
        v_and_b32 v201, 1, v{vI}
        v_lshl_add_u32 v202, v201, 7, v247
        ds_read_b64 v[204:205], v202 offset:16384
        v_lshlrev_b32 v203, 5, v201
        v_add_u32 v203, {COEF+640+64}, v203
        ds_read_b32 v206, v203
        s_waitcnt lgkmcnt(0)
        v_lshlrev_b32 v207, 16, v206
        v_and_b32 v208, 0xffff0000, v206
        v_rcp_f32 v208, v208
        ''')
        self.ln_pair(204, 207, 208, 236)
        self.ln_pair(205, 207, 208, 240)
        self.stamp(5)
        P(f'v_lshlrev_b32 v200, 4, v0')
        YR = ACC
        L = self.spin_begin()
        for f in range(NF):
            P(f's_mov_b32 s33, {Y1+f*4096}\n buffer_load_dwordx4 {vr(YR+4*f)}, v200, {SWS}, s33 offen sc1')
        P('v_mov_b32 v201, 0\n s_waitcnt vmcnt(0)')
        for f in range(0, NF, 2):
            P(f'v_max3_u32 v201, v201, v{YR+4*f}, v{YR+4*f+4}')
        P('v_cmp_eq_u32 vcc, -1, v201')
        self.spin_end_vcc(L)
        self.stamp(6)
        n = NF
        while n > 1:
            h = (n + 1) // 2
            for f in range(n - h):
                a = YR + 4*f; b = YR + 4*(f+h)
                P(f'v_pk_add_f32 {vr(a,2)}, {vr(a,2)}, {vr(b,2)}\n v_pk_add_f32 {vr(a+2,2)}, {vr(a+2,2)}, {vr(b+2,2)}')
            n = h
        self.apply_update(YR, 249, 236, 240, 204)
        P(f'''
        v_and_b32 v201, 1, v{vI}
        v_lshl_add_u32 v202, v201, 7, v247
        ds_write_b64 v202, v[204:205] offset:16384
        s_sub_u32 s16, s74, s75
        s_sub_u32 s17, s75, s74
        v_mov_b32 v206, s16
        v_mov_b32 v207, s17
        v_cmp_eq_u32 vcc, 1, v201
        v_cndmask_b32 v206, v206, v207, vcc
        v_add_u32 v206, 8, v206
        v_cmp_gt_u32 vcc, 16, v206
        v_lshrrev_b32 v207, 3, v206
        v_lshlrev_b32 v207, 14, v207
        v_and_b32 v208, 7, v206
        v_lshl_add_u32 v207, v208, 4, v207
        v_xor_b32 v208, 1, v201
        v_lshl_add_u32 v207, v208, 7, v207
        v_add_u32 v207, v207, v247
        s_and_saveexec_b64 s[34:35], vcc
        ds_write_b64 v207, v[204:205]
        s_mov_b64 exec, -1
        s_waitcnt lgkmcnt(0)
        s_barrier
        ''')
        for u in range(4): P(f'ds_read_b128 {vr(WK+40+4*u)}, v{vTW+1} offset:{u*1024}')
        P('s_waitcnt lgkmcnt(0)')
        t = WK + 56
        self.tile_stats(WK+40, t)
        self.mu_var(t, t+1, t+4, t+5)
        self.ms_chain(t+4, t+5, t+6, t+7, t+8)
        P(f'''
        v_mul_f32 v{t+9}, -v{t+6}, v{t+8}
        v_readlane_b32 s76, v{t+8}, 0
        v_readlane_b32 s77, v{t+9}, 0
        v_readlane_b32 s78, v{t+8}, 8
        v_readlane_b32 s79, v{t+9}, 8
        v_and_b32 v200, 1, v{vG}
        v_cmp_eq_u32 vcc, 1, v200
        v_cndmask_b32 v201, v248, v250, vcc
        v_and_b32 v202, 31, v2
        v_lshlrev_b32 v202, 2, v202
        v_add_u32 v202, {COEF}, v202
        v_cmp_eq_u32 vcc, s75, v201
        v_mov_b32 v203, s76
        v_mov_b32 v204, s77
        v_mov_b32 v205, s78
        v_mov_b32 v206, s79
        v_cndmask_b32 v203, v203, v205, vcc
        v_cndmask_b32 v204, v204, v206, vcc
        v_cmp_eq_u32 s[34:35], s74, v201
        s_or_b64 vcc, vcc, s[34:35]
        s_and_saveexec_b64 s[34:35], vcc
        ds_write2_b32 v202, v203, v204 offset0:0 offset1:80
        s_mov_b64 exec, -1
        s_waitcnt lgkmcnt(0)
        ''')
        self.qkv2([0, 1], noq=(0,))
        self.stamp(7)
        self.attention([(0, False, None, None, None), (1, True, 0, vBDC, vBDP)], vMC, O2, [(1, None, vSTS, 0)])
        self.stamp(8)
        P(f'''
        s_lshl_b32 s16, s7, 1
        s_lshr_b32 s17, s8, 1
        s_add_u32 s16, s16, s17
        s_sub_u32 s16, s16, s9
        s_and_b32 s16, s16, 15
        s_lshl_b32 s16, s16, 10
        s_and_b32 s17, s8, 1
        s_lshl_b32 s17, s17, 9
        s_add_u32 s16, s16, s17
        v_lshrrev_b32 v200, 1, v{vG}
        v_lshlrev_b32 v200, 8, v200
        v_lshl_add_u32 v200, v{vI}, 4, v200
        v_and_b32 v201, 1, v{vG}
        v_lshl_add_u32 v200, v201, 3, v200
        v_add_u32 v200, s16, v200
        ds_read_b64 v[202:203], v200 offset:16384
        ds_read_b32 v204, v{vCL} offset:{640+64}
        s_waitcnt lgkmcnt(0)
        v_lshlrev_b32 v206, 16, v204
        v_and_b32 v207, 0xffff0000, v204
        v_rcp_f32 v207, v207
        ''')
        for h in range(2): self.x_plus_ln(202+h, 206, 207, 208+4*h, vRES+h)
        P(f'''
        v_cmp_eq_u32 vcc, s74, v250
        v_cmp_eq_u32 s[34:35], s75, v250
        s_or_b64 vcc, vcc, s[34:35]
        s_nop 1
        v_cndmask_b32 v{vRES}, v{vRES}, v202, vcc
        v_cndmask_b32 v{vRES+1}, v{vRES+1}, v203, vcc
        s_barrier
        ''')
        self.stage([0], self.soffs_nat(O2), WK)
        P('s_waitcnt lgkmcnt(0)\n s_barrier')
        self.stamp(9)
        self.wo_phase([0], {0: (0, None, [(vSTS, 0)])}, X3, False)
        self.stamp(10)
        P(f'''
        s_cmp_lg_u32 s7, 0
        s_cbranch_scc1 L_fin
        s_mov_b32 s28, 0
        s_mov_b32 s29, 140
        v_cmp_gt_u32 s[36:37], 8, v{vI}
        v_subrev_u32 v200, s74, v250
        v_cmp_lt_u32 vcc, 7, v200
        s_or_b64 s[36:37], s[36:37], vcc
        v_cmp_gt_u32 vcc, 0x800, v250
        s_and_b64 s[36:37], s[36:37], vcc
        s_branch L_stage
        ''')

    def sigmoid_from_key(self, k, dst, t):
        P = self.P
        P(f'''
        v_ashrrev_i32 v{t}, 31, v{k}
        v_not_b32 v{t}, v{t}
        v_or_b32 v{t}, 0x80000000, v{t}
        v_xor_b32 v{dst}, v{k}, v{t}
        ''')
        self.bfround(dst, dst)
        P(f'''
        v_mul_f32 v{dst}, 0xbfb8aa3b, v{dst}
        v_exp_f32 v{dst}, v{dst}
        v_add_f32 v{dst}, 1.0, v{dst}
        v_rcp_f32 v{dst}, v{dst}
        ''')
        self.bfround(dst, dst)

    def apply_update(self, y, sg, xa, xb, dst):
        P = self.P
        for h, q in ((0, xa), (1, xb)):
            a = y + 2*h
            P(f'''
            v_cvt_pk_bf16_f32 v{a+1}, v{a}, v{a+1}
            v_lshlrev_b32 v{a}, 16, v{a+1}
            v_and_b32 v{a+1}, 0xffff0000, v{a+1}
            v_mul_f32 v{a}, v{a}, v{sg}
            v_mul_f32 v{a+1}, v{a+1}, v{sg}
            v_cvt_pk_bf16_f32 v{a+1}, v{a}, v{a+1}
            v_lshlrev_b32 v{a}, 16, v{a+1}
            v_and_b32 v{a+1}, 0xffff0000, v{a+1}
            v_pk_add_f32 {vr(a,2)}, {vr(a,2)}, {vr(q+2,2)}
            v_cvt_pk_bf16_f32 v{a+1}, v{a}, v{a+1}
            v_lshlrev_b32 v{a}, 16, v{a+1}
            v_and_b32 v{a+1}, 0xffff0000, v{a+1}
            v_pk_add_f32 {vr(a,2)}, {vr(a,2)}, {vr(q,2)}
            v_cvt_pk_bf16_f32 v{dst+h}, v{a}, v{a+1}
            ''')

    def role_ffn(self):
        P = self.P
        HB = 131072; XB = HB + 2048; AB = XB + 2048
        P(f'''
        L_ffn:
        s_sub_u32 s7, s4, 8
        s_cmp_ge_u32 s7, {NF}
        s_cbranch_scc1 L_end
        s_waitcnt lgkmcnt(0)
        s_load_dwordx2 s[40:41], s[0:1], 40
        s_load_dwordx2 s[44:45], s[0:1], 48
        s_load_dwordx2 s[48:49], s[0:1], 56
        s_mov_b32 s42, 1409024
        s_mov_b32 s43, 0x20000
        s_mov_b32 s46, 1409024
        s_mov_b32 s47, 0x20000
        s_mov_b32 s50, 1409024
        s_mov_b32 s51, 0x20000
        v_mov_b32 v20, 0
        buffer_load_dword v21, v20, {SWS}, 0 offen sc1
        v_mov_b32 v24, -1
        v_mov_b32 v25, -1
        v_mov_b32 v26, -1
        v_mov_b32 v27, -1
        v_lshlrev_b32 v5, 4, v0
        s_lshl_b32 s23, s7, 12
        s_add_u32 s16, s23, {Y1}
        s_add_u32 s17, s23, {Y2}
        buffer_store_dwordx4 v[24:27], v5, {SWS}, s16 offen sc1
        buffer_store_dwordx4 v[24:27], v5, {SWS}, s17 offen sc1
        v_lshrrev_b32 v10, 3, v2
        v_and_b32 v11, 7, v2
        v_bfe_u32 v12, v10, 1, 1
        v_and_b32 v13, 1, v1
        v_lshl_or_b32 v12, v13, 1, v12
        v_lshlrev_b32 v12, 1, v12
        v_xor_b32 v12, v12, v11
        v_lshl_add_u32 v13, v1, 3, v10
        v_mul_u32_u24 v6, 2752, v13
        v_lshl_add_u32 v6, v12, 4, v6
        s_lshl_b32 s10, s7, 7
        v_add_u32 v6, s10, v6
        v_lshlrev_b32 v7, 10, v13
        v_lshl_add_u32 v7, v12, 4, v7
        s_lshl_b32 s12, s7, 16
        v_add_u32 v7, s12, v7
        v_add_u32 v22, 32768, v7
        s_lshl_b32 s13, s8, 10
        ''')
        self.code_prefetch(28)
        P('s_waitcnt lgkmcnt(0)')
        for m, srd in enumerate(('s[40:43]', 's[44:47]')):
            for ks in range(16):
                P(f's_add_u32 m0, s13, {m*65536+ks*4096}\n s_mov_b32 s17, {ks*32*2752}\n buffer_load_dwordx4 v6, {srd}, s17 offen lds')
        P(f'''
        v_bfe_u32 v10, v2, 2, 2
        v_and_b32 v11, 3, v2
        v_lshrrev_b32 v12, 1, v10
        v_and_b32 v13, 1, v{vG}
        v_lshl_or_b32 v12, v13, 1, v12
        v_lshlrev_b32 v14, 10, v{vG}
        v_lshl_add_u32 v14, v10, 7, v14
        v_lshl_add_u32 v14, v11, 3, v14
        v_xor_b32 v13, v12, v1
        v_lshl_add_u32 v8, v13, 5, v14
        v_add_u32 v9, 65536, v8
        v_lshl_add_u32 v14, v12, 5, v14
        v_lshl_add_u32 v14, v1, 13, v14
        v_xor_b32 v15, 32, v14
        v_xor_b32 v16, 64, v14
        v_xor_b32 v17, 96, v14
        v_mov_b32 v24, 0
        v_mov_b32 v25, 0
        v_mov_b32 v26, 0
        v_mov_b32 v27, 0
        v_add_u32 v18, {AB}, v5
        ds_write_b128 v18, v[24:27]
        s_waitcnt vmcnt(32)
        v_readfirstlane_b32 {TAG}, v21
        s_mul_i32 {TAG}, {TAG}, 0x9e3779b1
        s_add_u32 {TAG}, {TAG}, 0x7f4a7c15
        s_waitcnt vmcnt(16) lgkmcnt(0)
        s_barrier
        s_lshl_b32 s16, s7, 2
        s_add_u32 s16, s16, {TCLR}
        v_mov_b32 v20, {TAG}
        v_mov_b32 v21, {OOB}
        v_cmp_eq_u32 vcc, 0, v0
        v_cndmask_b32 v19, v21, v0, vcc
        buffer_store_dword v20, v19, {SWS}, s16 offen sc1
        ''')
        def trs(base_a, v):
            for ks in range(16):
                for a in range(2):
                    P(f'ds_read_b64_tr_b16 {ar(base_a+4*ks+2*a,2)}, v{v} offset:{ks*4096+a*512}')
                    if (2*ks+a) % 12 == 11: P('s_waitcnt lgkmcnt(4)')
            P('s_waitcnt lgkmcnt(0)')
        trs(0, 8)
        P('s_barrier')
        for s2 in range(2):
            for seg in range(8):
                P(f's_add_u32 m0, s13, {s2*32768+seg*4096}\n s_mov_b32 s17, {seg*128}\n buffer_load_dwordx4 v{22 if s2 else 7}, s[48:51], s17 offen lds')
        P('s_waitcnt vmcnt(17)\n s_barrier')
        trs(64, 9)
        P('s_waitcnt vmcnt(0)\n s_barrier')
        k = 0
        for c in range(8):
            for s2 in range(2):
                for a in range(2):
                    P(f'ds_read_b64_tr_b16 {ar(128+(c*2+s2)*4+2*a,2)}, v{14+(c&3)} offset:{s2*32768+(c>>2)*4096+a*512}')
                    k += 1
                    if k % 12 == 0: P('s_waitcnt lgkmcnt(4)')
        P('s_waitcnt lgkmcnt(0)')
        P(f'''
        v_lshlrev_b32 v10, 3, v0
        v_add_u32 v10, {HB}, v10
        v_and_b32 v20, 1, v{vI}
        v_lshlrev_b32 v11, 5, v{vG}
        v_lshl_add_u32 v11, v20, 4, v11
        v_add_u32 v11, {HB}, v11
        v_lshrrev_b32 v21, 1, v{vG}
        v_lshl_add_u32 v21, v1, 1, v21
        v_lshlrev_b32 v12, 9, v21
        v_lshl_add_u32 v12, v{vI}, 4, v12
        v_and_b32 v21, 1, v{vG}
        v_lshl_add_u32 v12, v21, 3, v12
        v_add_u32 v12, {AB+14*16}, v12
        v_lshlrev_b32 v13, 9, v{vG}
        v_lshl_add_u32 v13, v{vI}, 4, v13
        v_add_u32 v13, {AB}, v13
        s_lshl_b32 s16, s7, 2
        s_add_u32 s16, s16, s8
        s_cmp_lt_u32 s16, 86
        s_cselect_b32 s16, 2, 0
        v_cmp_gt_u32 s[64:65], s16, v{vI}
        s_cmp_eq_u32 s7, 0
        s_cselect_b32 s16, 0, {OOB}
        v_or_b32 v19, s16, v19
        v_min_u32 v20, {NF-1}, v2
        v_lshlrev_b32 v20, 2, v20
        s_mov_b32 s33, {TCLR}
        ''')
        self.check_flags(20, 's33', 21)
        self.stamp(2)
        for layer in (1, 2):
            cand, nt, xbuf, rg, sel, ybuf = (CAND1, 140, X1, RG1, SEL1, Y1) if layer == 1 else (CAND2, 141, X3, RG3, SEL2, Y2)
            self.poll_cands(cand, nt, 32)
            self.stamp(3 if layer == 1 else 8)
            self.key_to_loc('s80', 's30'); self.key_to_loc('s81', 's31')
            P(f'''
            v_bfe_u32 v20, v0, 1, 1
            v_cmp_eq_u32 vcc, 1, v20
            v_mov_b32 v21, s80
            v_mov_b32 v22, s81
            v_cndmask_b32 v21, v21, v22, vcc
            v_lshlrev_b32 v23, 4, v21
            v_lshrrev_b32 v22, 4, v21
            v_lshlrev_b32 v22, 14, v22
            v_and_b32 v21, 15, v21
            v_lshl_add_u32 v22, v21, 4, v22
            v_lshrrev_b32 v21, 2, v0
            v_lshl_add_u32 v22, v21, 8, v22
            v_and_b32 v21, 1, v0
            v_lshl_add_u32 v22, v21, 3, v22
            s_mov_b32 s33, {xbuf}
            s_mov_b32 s32, {rg}
            buffer_load_dwordx2 v[28:29], v22, {SWS}, s33 offen sc1
            ''')
            L = self.spin_begin()
            P(f'''
            buffer_load_dwordx4 v[24:27], v23, {SWS}, s32 offen sc1
            ''')
            if layer == 1:
                self.loc_to_vpos('s74', 's80', 's16'); self.loc_to_vpos('s75', 's81', 's16')
                P('s_mov_b32 s82, s74\n s_mov_b32 s83, s75')
            else:
                for d, loc in (('s82', 's80'), ('s83', 's81')):
                    self.loc_to_vpos(d, loc, 's16')
                    P(f'''
                    s_bitcmp1_b32 {loc}, 3
                    s_cselect_b32 s16, s75, s74
                    s_and_b32 s17, {loc}, 7
                    s_add_u32 s16, s16, s17
                    s_cmp_ge_u32 {loc}, 2240
                    s_cselect_b32 {d}, s16, {d}
                    ''')
            P(f'''
            s_waitcnt vmcnt(0)
            v_cmp_ne_u32 vcc, {TAG}, v27
            ''')
            self.spin_end_vcc(L)
            P(f'''
            v_mov_b32 v32, s82
            v_mov_b32 v33, s83
            v_mov_b32 v34, 0
            v_mov_b32 v35, {TAG}
            s_mov_b32 s16, {sel}
            buffer_store_dwordx4 v[32:35], v19, {SWS}, s16 offen sc1
            v_lshlrev_b32 v20, 16, v26
            v_and_b32 v21, 0xffff0000, v26
            v_rcp_f32 v21, v21
            ''')
            self.ln_pair(28, 20, 21, 36, h=30)
            self.ln_pair(29, 20, 21, 40, h=31)
            P(f'''
            ds_write_b64 v10, v[30:31]
            ds_write_b64 v10, v[28:29] offset:2048
            s_waitcnt lgkmcnt(0)
            s_barrier
            ''')
            self.stamp(4 if layer == 1 else 9)
            FR = 64
            for ks in range(16):
                P(f'ds_read_b128 {vr(FR+4*ks)}, v11 offset:{ks*128}')
                if ks == 11: P('s_waitcnt lgkmcnt(8)')
            for ks in range(16):
                if ks % 4 == 0: P(f's_waitcnt lgkmcnt({12-ks})')
                P(f'v_mfma_f32_16x16x32_bf16 v[44:47], {ar(4*ks)}, {vr(FR+4*ks)}, {"v[44:47]" if ks else 0}')
                P(f'v_mfma_f32_16x16x32_bf16 v[48:51], {ar(64+4*ks)}, {vr(FR+4*ks)}, {"v[48:51]" if ks else 0}')
            P('''
            v_cvt_pk_bf16_f32 v52, v44, v45
            v_cvt_pk_bf16_f32 v53, v46, v47
            v_cvt_pk_bf16_f32 v54, v48, v49
            v_cvt_pk_bf16_f32 v55, v50, v51
            v_lshlrev_b32 v44, 16, v52
            v_and_b32 v45, 0xffff0000, v52
            v_lshlrev_b32 v46, 16, v53
            v_and_b32 v47, 0xffff0000, v53
            v_lshlrev_b32 v48, 16, v54
            v_and_b32 v49, 0xffff0000, v54
            v_lshlrev_b32 v50, 16, v55
            v_and_b32 v51, 0xffff0000, v55
            ''')
            for r in range(4): P(f'v_mul_f32 v{56+r}, 0xbfb8aa3b, v{44+r}')
            for r in range(4): P(f'v_exp_f32 v{56+r}, v{56+r}')
            for r in range(4): P(f'v_add_f32 v{56+r}, 1.0, v{56+r}')
            for r in range(4): P(f'v_rcp_f32 v{56+r}, v{56+r}')
            for r in range(4): P(f'v_mul_f32 v{44+r}, v{44+r}, v{56+r}')
            P(f'''
            v_cvt_pk_bf16_f32 v52, v44, v45
            v_cvt_pk_bf16_f32 v53, v46, v47
            v_lshlrev_b32 v44, 16, v52
            v_and_b32 v45, 0xffff0000, v52
            v_lshlrev_b32 v46, 16, v53
            v_and_b32 v47, 0xffff0000, v53
            v_pk_mul_f32 v[44:45], v[44:45], v[48:49]
            v_pk_mul_f32 v[46:47], v[46:47], v[50:51]
            v_cvt_pk_bf16_f32 v52, v44, v45
            v_cvt_pk_bf16_f32 v53, v46, v47
            s_mov_b64 exec, s[64:65]
            ds_write_b64 v12, v[52:53]
            s_mov_b64 exec, -1
            s_waitcnt lgkmcnt(0)
            s_barrier
            ''')
            k = 0
            for c in range(8):
                for s2 in range(2):
                    P(f'ds_read_b128 {vr(FR+4*k)}, v13 offset:{s2*2048+(14-2*c)*16}')
                    if k == 11: P('s_waitcnt lgkmcnt(8)')
                    k += 1
            for k in range(16):
                if k % 4 == 0: P(f's_waitcnt lgkmcnt({12-k})')
                P(f'v_mfma_f32_16x16x32_bf16 v[44:47], {ar(128+4*k)}, {vr(FR+4*k)}, {"v[44:47]" if k else 0}')
            P(f'''
            s_add_u32 s16, s23, {ybuf}
            v_min_u32 v44, -2, v44
            buffer_store_dwordx4 v[44:47], v5, {SWS}, s16 offen sc1
            ''')
            self.stamp(5 if layer == 1 else 10)
        P(f'''
        s_cmp_ge_u32 s7, 16
        s_cbranch_scc1 L_fin
        s_cmp_lg_u32 s8, 0
        s_cbranch_scc1 L_fin
        v_and_b32 v20, 1, v{vI}
        v_cmp_eq_u32 vcc, 1, v20
        v_mov_b32 v21, s30
        v_mov_b32 v22, s31
        v_cndmask_b32 v21, v21, v22, vcc
        v_mov_b32 v24, s82
        v_mov_b32 v22, s83
        v_cndmask_b32 v24, v24, v22, vcc
        ''')
        self.sigmoid_from_key(21, 23, 22)
        P(f'''
        s_lshr_b32 s16, s7, 2
        s_lshl_b32 s16, s16, 7
        s_and_b32 s17, s7, 3
        s_lshl_b32 s17, s17, 2
        s_add_u32 s16, s16, s17
        v_lshrrev_b32 v25, 1, v{vI}
        v_lshl_add_u32 v25, v25, 4, s16
        v_lshrrev_b32 v26, 3, v25
        v_lshl_add_u32 v26, v26, 1, v20
        v_lshlrev_b32 v26, 4, v26
        v_bfe_u32 v27, v25, 2, 1
        v_lshl_add_u32 v26, v27, 3, v26
        v_add_u32 v26, {HB}, v26
        ds_read_b64 v[28:29], v26
        ds_read_b64 v[30:31], v26 offset:2048
        v_and_b32 v27, 1023, v24
        v_lshlrev_b32 v27, 11, v27
        v_bfe_u32 v24, v24, 10, 1
        v_lshl_or_b32 v27, v24, 10, v27
        v_lshl_add_u32 v27, v25, 1, v27
        v_mov_b32 v24, {OOB}
        v_cmp_gt_u32 vcc, 16, v2
        v_cndmask_b32 v27, v24, v27, vcc
        v_lshlrev_b32 v25, 12, v{vG}
        v_lshl_add_u32 v25, v{vI}, 4, v25
        v_cmp_gt_u32 vcc, {NF-20}, v{vG}
        v_cndmask_b32 v26, v24, v25, vcc
        s_lshl_b32 s33, s7, 8
        s_add_u32 s33, s33, {Y2}
        s_waitcnt lgkmcnt(0)
        v_lshlrev_b32 v36, 16, v30
        v_and_b32 v37, 0xffff0000, v30
        v_lshlrev_b32 v38, 16, v28
        v_and_b32 v39, 0xffff0000, v28
        v_lshlrev_b32 v40, 16, v31
        v_and_b32 v41, 0xffff0000, v31
        v_lshlrev_b32 v42, 16, v29
        v_and_b32 v43, 0xffff0000, v29
        ''')
        L = self.spin_begin()
        for m in range(6):
            P(f's_add_u32 s16, s33, {m*16384}\n buffer_load_dwordx4 {vr(64+4*m)}, v{25 if m < 5 else 26}, {SWS}, s16 offen sc1')
        P('''
        s_waitcnt vmcnt(0)
        v_max3_u32 v32, v64, v68, v72
        v_max3_u32 v32, v32, v76, v80
        v_max_u32 v32, v32, v84
        v_cmp_eq_u32 vcc, -1, v32
        ''')
        self.spin_end_vcc(L)
        for a, b in ((64, 68), (72, 76), (80, 84), (64, 72), (64, 80)):
            P(f'v_pk_add_f32 {vr(a,2)}, {vr(a,2)}, {vr(b,2)}\n v_pk_add_f32 {vr(a+2,2)}, {vr(a+2,2)}, {vr(b+2,2)}')
        for sw in ('v_permlane16_swap_b32', 'v_permlane32_swap_b32'):
            for r in range(4): P(f'v_mov_b32 v{68+r}, v{64+r}')
            for r in range(4): P(f'{sw} v{64+r}, v{68+r}')
            P('v_pk_add_f32 v[64:65], v[64:65], v[68:69]\n v_pk_add_f32 v[66:67], v[66:67], v[70:71]')
        self.apply_update(64, 23, 36, 40, 32)
        P(f'''
        buffer_store_dwordx2 v[32:33], v27, {SOUT}, 0 offen sc1
        v_mov_b32 v20, {TAG}
        buffer_store_dword v20, v19, {SWS}, 0 offen sc1
        ''')
        self.stamp(11)

    def build(self):
        P = self.P
        self.prologue()
        self.qkv1()
        P('s_cmp_eq_u32 s6, 28\n s_cbranch_scc1 L_fix')
        self.role_a()
        self.role_fix()
        self.role_ffn()
        P('L_fin:')
        self.flush_stamps()
        P('L_end:\n s_endpgm')
        nops = P.fix_hazards()
        txt = HDR + '; @launch grid=(256,1,1) block=(256,1,1) lds=163840\n.amdgcn_target "amdgcn-amd-amdhsa--gfx950"\n.text\n'
        txt += f'.globl {NAME}_kernel\n.p2align 8\n.type {NAME}_kernel,@function\n{NAME}_kernel:\n' + P.text()
        txt += '.fill 16640, 4, 0xbf810000\n'
        txt += f'''.section .rodata,"a"
.p2align 6
.amdhsa_kernel {NAME}_kernel
  .amdhsa_next_free_vgpr 512
  .amdhsa_next_free_sgpr 102
  .amdhsa_accum_offset 256
  .amdhsa_group_segment_fixed_size 0
  .amdhsa_kernarg_size 88
  .amdhsa_user_sgpr_count 2
  .amdhsa_user_sgpr_kernarg_segment_ptr 1
  .amdhsa_system_sgpr_workgroup_id_x 1
.end_amdhsa_kernel
'''
        return txt

if __name__ == '__main__':
    open('k_diag.s', 'w').write(Gen(diag=True).build())
    open('k.s', 'w').write(Gen(diag=False).build())
```
